```python
import torch

def _softmax(x, axis=-1):
    return torch.softmax(x, dim=axis)

def _gelu(x):
    return torch.nn.functional.gelu(x, approximate='tanh')

def _silu(x):
    return torch.nn.functional.silu(x)

def _sigmoid(x):
    return torch.sigmoid(x)

def _layernorm(x, axis=-1, eps=1e-05):
    m = x.mean(dim=axis, keepdim=True)
    v = x.var(dim=axis, keepdim=True, unbiased=False)
    return (x - m) / torch.sqrt(v + eps)

def _scatter_add(tgt, idx, src, axis=0):
    return tgt.clone().index_add_(axis, idx, src)

def _segment_sum(src, seg, n):
    out = torch.zeros((n,) + src.shape[1:], dtype=src.dtype)
    return out.index_add_(0, seg, src)

def _pad(x, pw):
    flat = tuple((v for pair in reversed(pw) for v in pair))
    return torch.nn.functional.pad(x, flat)
kernel_name = 'adaLN_cond__mha_block_cached__glu_gated_geglu__decode'

def setup_inputs():

    _w = lambda a: (lambda t: t.to(torch.bfloat16) if t.is_floating_point() else t)(torch.as_tensor(a))

    def _A_setup():
        B, Sq, D = (1, 1, 640)
        H, Sk, Dh = (32, 32768, 128)
        return {'x': _w((lambda *s: torch.randn(*s, dtype=torch.bfloat16) * 0.1)(B, Sq, D)), 'k_cache': _w((lambda *s: torch.randn(*s, dtype=torch.bfloat16) * 0.8)(B, H, Sk, Dh)), 'v_cache': _w((lambda *s: torch.randn(*s, dtype=torch.bfloat16) * 3.2)(B, H, Sk, Dh)), 'wq': _w((lambda *s: torch.randn(*s, dtype=torch.bfloat16) * 0.8)(D, H * Dh) * D ** (-0.5)), 'wo': _w((lambda *s: torch.randn(*s, dtype=torch.bfloat16) * 3.2)(H * Dh, D) * (H * Dh) ** (-0.5))}
    _A_in = _A_setup()

    def _B_setup():
        B, S, Dm, Df = (1, 1, 640, 1728)
        return {'x': _w((lambda *s: torch.randn(*s, dtype=torch.bfloat16) * 0.1)(B, S, Dm)), 'w_gate': _w((lambda *s: torch.randn(*s, dtype=torch.bfloat16) * 3.2)(Dm, Df) * Dm ** (-0.5)), 'w_up': _w((lambda *s: torch.randn(*s, dtype=torch.bfloat16) * 3.2)(Dm, Df) * Dm ** (-0.5)), 'w_down': _w((lambda *s: torch.randn(*s, dtype=torch.bfloat16) * 3.2)(Df, Dm) * Df ** (-0.5))}
    _B_in = _B_setup()
    return {'A_x': _A_in['x'], 'A_k_cache': _A_in['k_cache'], 'A_v_cache': _A_in['v_cache'], 'A_wq': _A_in['wq'], 'A_wo': _A_in['wo'], 'B_x': _B_in['x'], 'B_w_gate': _B_in['w_gate'], 'B_w_up': _B_in['w_up'], 'B_w_down': _B_in['w_down'], 'c': _w((lambda *s: torch.randn(*s, dtype=torch.bfloat16) * 0.4)(1, 640) * 8.0), 'w_mod': _w((lambda *s: torch.randn(*s, dtype=torch.bfloat16) * 0.4)(640, 6 * 640) * 640 ** (-0.5) * 8.0)}

def reference(A_x, A_k_cache, A_v_cache, A_wq, A_wo, B_x, B_w_gate, B_w_up, B_w_down, c, w_mod):

    def _A_ref(x, k_cache, v_cache, wq, wo):
        B, Sq, D = x.shape
        H, Dh = (32, 128)
        q = (lambda x, *d: x.permute(*d))((x @ wq).reshape(B, Sq, H, Dh), 0, 2, 1, 3)
        scores = torch.einsum('bhqd,bhkd->bhqk', q, k_cache) * Dh ** (-0.5)
        p = _softmax(scores, axis=-1)
        o = torch.einsum('bhqk,bhkd->bhqd', p, v_cache)
        return (lambda x, *d: x.permute(*d))(o, 0, 2, 1, 3).reshape(B, Sq, H * Dh) @ wo

    def _B_ref(x, w_gate, w_up, w_down):
        g = torch.einsum('bsd,df->bsf', x, w_gate)
        u = torch.einsum('bsd,df->bsf', x, w_up)
        h = _gelu(g) * u
        return torch.einsum('bsf,fd->bsd', h, w_down)
    x = A_x
    mod = (_silu(c) @ w_mod).reshape(c.shape[0], 6, 1, -1)
    sa, ca, ga, sb, cb, gb = (mod[:, 0].clone(), mod[:, 1].clone(), mod[:, 2].clone(), mod[:, 3].clone(), mod[:, 4].clone(), mod[:, 5].clone())
    h = _layernorm(x, axis=-1) * (1 + ca) + sa
    x = x + ga * _A_ref(h, A_k_cache, A_v_cache, A_wq, A_wo)
    h = _layernorm(x, axis=-1) * (1 + cb) + sb
    x = x + gb * _B_ref(h, B_w_gate, B_w_up, B_w_down)
    return x
```

```python
import re

TRANS = ("v_exp_f32", "v_log_f32", "v_rcp_f32", "v_rsq_f32", "v_sqrt_f32", "v_sin_f32", "v_cos_f32", "v_rcp_iflag_f32")

def split_ops(s):
    out, depth, cur = [], 0, ""
    for ch in s:
        if ch in "[(": depth += 1
        if ch in "])": depth -= 1
        if ch == "," and depth == 0:
            out.append(cur.strip()); cur = ""
        else:
            cur += ch
    if cur.strip(): out.append(cur.strip())
    return out

REG = re.compile(r"^-?\|?(v|s|a)(\d+)\|?$")
RNG = re.compile(r"^-?\|?(v|s|a)\[(\d+):(\d+)\]\|?$")
def regs_of(op):
    op = op.strip()
    if op.startswith("abs(") and op.endswith(")"): op = op[4:-1]
    if op.startswith("-abs(") and op.endswith(")"): op = op[5:-1]
    m = REG.match(op)
    if m: return {(m.group(1), int(m.group(2)))}
    m = RNG.match(op)
    if m: return {(m.group(1), i) for i in range(int(m.group(2)), int(m.group(3)) + 1)}
    if op == "vcc": return {("s", "vcc")}
    if op in ("vcc_lo", "vcc_hi"): return {("s", "vcc")}
    if op == "exec": return {("s", "exec")}
    if op == "m0": return {("s", "m0")}
    return set()

class Ins:
    def __init__(self, text):
        self.text = text
        t = text.split(";")[0].strip()
        self.label = None; self.op = None
        if t.endswith(":"):
            self.label = t[:-1]; return
        if not t or t.startswith("."):
            return
        parts = t.split(None, 1)
        self.op = parts[0]
        rest = parts[1] if len(parts) > 1 else ""
        ops = split_ops(rest)
        mods = ""
        if ops:
            f = ops[-1].split(None, 1)
            ops[-1] = f[0]
            if len(f) > 1: mods = f[1]
        self.ops = ops; self.mods = mods
        op = self.op
        self.dpp = "_dpp" in op or any(k in mods for k in ("quad_perm", "row_ror", "row_shr", "row_shl", "row_newbcast", "row_half_mirror", "row_mirror", "row_bcast"))
        self.base = re.sub(r"_(e32|e64|dpp|sdwa)$", "", op)
        self.valu = op.startswith("v_") and not op.startswith("v_mfma")
        self.mfma = op.startswith("v_mfma")
        self.vmem = op.startswith(("buffer_", "global_", "flat_"))
        self.ds = op.startswith("ds_")
        self.salu = op.startswith("s_")
        self.trans = self.base in TRANS
        self.dot = self.base.startswith("v_dot")
        self.perml = self.base.startswith("v_permlane")
        self.rdlane = self.base in ("v_readlane_b32", "v_readfirstlane_b32")
        self.wrlane = self.base == "v_writelane_b32"
        R = [regs_of(o) for o in ops]
        self.w = set(); self.r = set(); self.srcc = set(); self.ab = set(); self.lanesel = set(); self.store_data = set(); self.mask = set()
        if self.valu:
            b = self.base
            if b.startswith("v_cmp"):
                self.w = R[0] | ({("s", "exec")} if b.startswith("v_cmpx") else set())
                for x in R[1:]: self.r |= x
            elif self.perml and "swap" in b:
                self.w = R[0] | R[1]; self.r = R[0] | R[1]
            elif b in ("v_add_co_u32", "v_sub_co_u32", "v_subrev_co_u32"):
                self.w = R[0] | R[1]
                for x in R[2:]: self.r |= x
            elif b in ("v_addc_co_u32", "v_subb_co_u32"):
                self.w = R[0] | R[1]
                for x in R[2:]: self.r |= x
            else:
                self.w = R[0]
                for x in R[1:]: self.r |= x
                if b in ("v_fmac_f32", "v_dot2c_f32_bf16", "v_writelane_b32", "v_mac_f32", "v_pk_fmac_f16") or self.dpp:
                    self.r |= R[0]
                if b == "v_cndmask_b32":
                    if len(ops) >= 4: self.mask = R[3]
                    else: self.mask = {("s", "vcc")}; self.r |= self.mask
                if b == "v_readlane_b32": self.lanesel = R[2]
                if b == "v_writelane_b32": self.lanesel = R[2]
                if b == "v_dot2_f32_bf16": self.srcc = R[3]; self.ab = R[1] | R[2]
                if b == "v_dot2c_f32_bf16": self.srcc = R[0]; self.ab = R[1] | R[2]
        elif self.mfma:
            self.w = R[0]; self.ab = R[1] | R[2]; self.srcc = R[3]; self.r = self.ab | self.srcc
            self.passes = 4 if "16x16x32" in op or "16x16x16" in op else (8 if "32x32x16" in op or "32x32x8" in op else None)
            assert self.passes, op
        elif self.vmem:
            islds = " lds" in (" " + mods)
            if "load" in op and not islds:
                self.w = R[0]
                for x in R[1:]: self.r |= x
            elif "atomic" in op:
                for x in R: self.r |= x
                if "sc0" in mods: self.w = R[0]
            else:
                for x in R: self.r |= x
                if "store" in op:
                    self.store_data = R[0] if op.startswith("buffer_") else R[1]
            self.ldsdma = islds
            self.wide = op.endswith(("x3", "x4"))
        elif self.ds:
            if "read" in op or "_rtn" in op or "permute" in op or "swizzle" in op:
                self.w = R[0]
                for x in R[1:]: self.r |= x
            else:
                for x in R: self.r |= x
        elif self.salu:
            if op.startswith(("s_cmp", "s_cbranch", "s_branch", "s_waitcnt", "s_nop", "s_barrier", "s_endpgm", "s_sleep", "s_setprio", "s_bitcmp")):
                for x in R: self.r |= x
            else:
                self.w = R[0] if R else set()
                for x in R[1:]: self.r |= x
                if "saveexec" in op: self.w |= {("s", "exec")}
        self.states = 1
        if op == "s_nop": self.states = int(ops[0], 0) + 1

def vregs(s): return {x for x in s if x[0] in ("v", "a")}
def sregs(s): return {x for x in s if x[0] == "s"}

def required(p, c):
    need = 0
    if p.op is None or c.op is None: return 0
    pv = vregs(p.w)
    if p.valu:
        if pv & vregs(c.r):
            if c.valu and c.dpp: need = max(need, 2)
            if c.valu and c.perml: need = max(need, 2)
            if c.valu and c.rdlane: need = max(need, 1)
            if c.mfma: need = max(need, 2)
            if p.trans and (c.valu or c.mfma) and not c.trans: need = max(need, 1)
            if p.trans and c.trans: need = max(need, 1)
        if p.dot:
            touch = pv & (vregs(c.r) | vregs(c.w))
            if touch:
                same = c.op is not None and c.valu and c.base == p.base
                if same and not (pv & vregs(c.ab)): pass
                else: need = max(need, 3)
        ps = sregs(p.w)
        if ps:
            if c.valu and (ps & (sregs(c.r) | c.mask)): need = max(need, 2)
            if c.valu and (ps & c.lanesel): need = max(need, 4)
            if c.vmem and (ps & sregs(c.r)): need = max(need, 5)
            if ("s", "exec") in ps:
                if c.valu and c.dpp: need = max(need, 5)
                if c.mfma: need = max(need, 4)
                if c.valu and (c.rdlane or c.wrlane or c.perml): need = max(need, 4)
            if c.salu and (ps & sregs(c.r)): need = max(need, 1)
    if p.mfma:
        D = vregs(p.w)
        n_read = {4: 8, 8: 12}[p.passes]; n_c = {4: 6, 8: 10}[p.passes]
        if c.mfma:
            if D & vregs(c.ab): need = max(need, n_read)
            if D & vregs(c.srcc):
                if not (vregs(c.srcc) == D and c.passes == p.passes): need = max(need, n_c)
            elif D & vregs(c.w): need = max(need, n_c)
        elif c.valu or c.vmem or c.ds:
            if D & (vregs(c.r) | vregs(c.w)): need = max(need, n_read)
        if c.valu and (vregs(p.srcc) & vregs(c.w)): need = max(need, {4: 3, 8: 7}[p.passes])
    if p.vmem and getattr(p, "wide", False) and p.store_data:
        if vregs(p.store_data) & vregs(c.w):
            need = max(need, 2 if c.valu else 1)
    if p.salu and ("s", "m0") in p.w:
        if c.vmem and getattr(c, "ldsdma", False): need = max(need, 1)
        if c.valu and ("s", "m0") in (c.r | c.lanesel): need = max(need, 1)
    return need

MAXW = 12
def insert_nops(lines):
    ins = [Ins(l) for l in lines]
    changed = True; rounds = 0
    while changed:
        changed = False; rounds += 1
        labels = {x.label: i for i, x in enumerate(ins) if x.label}
        preds = {i: [] for i in range(len(ins))}
        for i, x in enumerate(ins):
            nxt = i + 1
            if x.op in ("s_branch",):
                preds[labels[x.ops[0]]].append(i); continue
            if x.op == "s_endpgm": continue
            if x.op and x.op.startswith("s_cbranch"):
                preds[labels[x.ops[0]]].append(i)
            if nxt < len(ins): preds[nxt].append(i)
        out = []
        for i, c in enumerate(ins):
            if c.op is None:
                out.append(c); continue
            worst = 0
            stack = [(p, 0) for p in preds[i]]
            seen = {}
            while stack:
                j, dist = stack.pop()
                if dist >= MAXW: continue
                if seen.get(j, 99) <= dist: continue
                seen[j] = dist
                p = ins[j]
                if p.op is not None:
                    need = required(p, c)
                    if need > dist: worst = max(worst, need - dist)
                    d2 = dist + p.states
                else:
                    d2 = dist
                for k in preds[j]: stack.append((k, d2))
            if worst > 0:
                n = worst
                while n > 0:
                    k = min(n, 16); out.append(Ins("s_nop %d" % (k - 1))); out[-1].auto = True; n -= k
                changed = True
            out.append(c)
        ins = out
        if rounds > 10: raise RuntimeError("hazard pass does not converge")
    return [x.text for x in ins]

class Asm:
    def __init__(self):
        self.lines = []
        self.uid = 0
    def __call__(self, *ls):
        for l in ls:
            for x in l.split("\n"):
                x = x.strip()
                if x: self.lines.append(x)
    def label(self, name): self.lines.append(name + ":")
    def newlabel(self, base):
        self.uid += 1; return "%s_%d" % (base, self.uid)
    def comment(self, t): self.lines.append("; " + t)
    def text(self, nops=True):
        L = insert_nops(self.lines) if nops else self.lines
        out = []
        for l in L:
            if l.endswith(":") or l.startswith((";", ".")): out.append(l)
            else: out.append("    " + l)
        return "\n".join(out)

if __name__ == "__main__":
    a = Asm()
    a("v_add_f32 v1, v2, v3")
    a("v_add_f32_dpp v4, v1, v1 row_ror:8 row_mask:0xf bank_mask:0xf")
    a("v_exp_f32 v5, v4"); a("v_mul_f32 v6, v5, v5")
    a("v_readfirstlane_b32 s4, v6"); a("buffer_load_dword v7, v8, s[8:11], s4 offen")
    a("v_mfma_f32_16x16x32_bf16 v[16:19], v[8:11], v[12:15], v[16:19]"); a("v_mov_b32 v20, v16")
    a("v_dot2_f32_bf16 v30, v1, v2, v30"); a("v_dot2_f32_bf16 v30, v1, v2, v30"); a("v_add_f32 v31, v30, v30")
    a("L1:"); a("v_add_f32_dpp v4, v31, v31 row_ror:8 row_mask:0xf bank_mask:0xf"); a("v_mov_b32 v31, 0"); a("s_cbranch_scc1 L1")
    print(a.text())
```

```python
import sys, struct
from asmlib import Asm

KNAME = "adaLN_cond__mha_block_cached__glu_gated_geglu__decode_kernel"
def f32(x): return "0x%08x" % struct.unpack("<I", struct.pack("<f", x))[0]
LOG2E = 1.4426950408889634
SCALE = 128 ** -0.5
SENT = 0xFFFFFFFF
OOB = 0x40000000

WS_W, WS_MOD, WS_Q, WS_REC, WS_Y1, WS_Y2, WS_STAMP = 0, 0x1000, 0x9000, 0x20000, 0x60000, 0x68000, 0x100000
WS_SIZE = 0x200000
L_Q = 0
L_ACT = L_Q + 256
L_X = L_ACT + 2048
L_X1, L_X2, L_X3, L_X5, L_X4 = L_X, L_X + 256, L_X + 512, L_X + 1024, L_X + 2048
L_ACT2 = L_X + 5120
L_PART = L_ACT2 + 256
L_PML = L_PART + 4096
L_W0 = 12288
assert L_PML + 64 <= L_W0
L_WM, L_WQ = L_W0, L_W0 + 20480
L_TW = L_W0
LDS_BYTES = L_W0 + 122880
LDS_ALLOC = (LDS_BYTES + 1279) // 1280 * 1280

class Cfg:
    NP = 4
    R = 2
    THR = 4
    stamps = False
    spin_limit = 200000
    ldflags = "nt"
    wflags = ""
    def __init__(self, **kw):
        for k, v in kw.items():
            assert hasattr(self, k), k
            setattr(self, k, v)

def gen(cfg):
    a = Asm()
    NSTAMP = 16
    stamp_regs = {}
    def stamp(i):
        if cfg.stamps:
            a("s_memrealtime s[%d:%d]" % (64 + 2 * i, 65 + 2 * i))
    def stamps_flush(wave_slot_sgpr, srd):
        if not cfg.stamps: return
        a("s_waitcnt lgkmcnt(0)")
        a("v_mov_b32 v1, 0")
        for i in range(NSTAMP):
            a("s_mov_b32 m0, %d" % i)
            a("v_writelane_b32 v1, s%d, m0" % (64 + 2 * i))
        a("s_mul_i32 s96, s2, 12"); a("s_add_u32 s96, s96, %s" % wave_slot_sgpr); a("s_lshl_b32 s96, s96, 6"); a("s_add_u32 s96, s96, %d" % WS_STAMP)
        a("v_and_b32 v2, 63, v0"); a("v_lshlrev_b32 v2, 2, v2")
        a("v_cmp_gt_u32 vcc, 64, v2"); a("v_mov_b32 v3, %d" % OOB); a("v_cndmask_b32 v2, v3, v2, vcc")
        a("buffer_store_dword v1, v2, %s, s96 offen" % srd)
        a("s_waitcnt vmcnt(0)")
    def srd(dst, lo, hi, size):
        a("s_mov_b32 s%d, s%d" % (dst, lo)); a("s_and_b32 s%d, s%d, 0xffff" % (dst + 1, hi))
        a("s_mov_b32 s%d, 0x%x" % (dst + 2, size)); a("s_mov_b32 s%d, 0x20000" % (dst + 3))
    def S4(n): return "s[%d:%d]" % (n, n + 3)
    def V(n, k=1): return "v%d" % n if k == 1 else "v[%d:%d]" % (n, n + k - 1)
    DPPF = "row_mask:0xf bank_mask:0xf"
    def bf16_round(dst, src, tmp=None):
        a("v_cvt_pk_bf16_f32 %s, %s, %s" % (dst, src, src)); a("v_and_b32 %s, 0xffff0000, %s" % (dst, dst))
    def wave_allreduce_add(v, t):
        a("v_add_f32_dpp %s, %s, %s quad_perm:[1,0,3,2] %s" % (v, v, v, DPPF))
        a("v_add_f32_dpp %s, %s, %s quad_perm:[2,3,0,1] %s" % (v, v, v, DPPF))
        a("v_add_f32_dpp %s, %s, %s row_ror:4 %s" % (v, v, v, DPPF))
        a("v_add_f32_dpp %s, %s, %s row_ror:8 %s" % (v, v, v, DPPF))
        a("v_mov_b32 %s, %s" % (t, v)); a("v_permlane16_swap_b32 %s, %s" % (v, t)); a("v_add_f32 %s, %s, %s" % (v, v, t))
        a("v_mov_b32 %s, %s" % (t, v)); a("v_permlane32_swap_b32 %s, %s" % (v, t)); a("v_add_f32 %s, %s, %s" % (v, v, t))

    a("s_cmp_ge_u32 s2, 256"); a("s_cbranch_scc1 L_END")
    a("s_load_dwordx16 s[16:31], s[0:1], 0")
    a("s_load_dwordx8 s[32:39], s[0:1], 64")
    a("s_load_dwordx4 s[40:43], s[0:1], 96")
    stamp(0)
    a("v_lshrrev_b32 v1, 6, v0")
    a("v_readfirstlane_b32 s3, v1")
    a("v_and_b32 v1, 63, v0")
    a("s_cmp_ge_u32 s3, 8"); a("s_cbranch_scc1 L_CW")

    vLane, vOff, vQ, vM, vL, vAcc = 1, 2, 4, 8, 9, 10
    vS, vA, vB, vC, vT, vP, vAl, vMn = 18, 22, 23, 24, 25, 26, 27, 28
    vU = 18
    vBUF = 36
    def buf(r, kv, j): return vBUF + r * 32 + kv * 16 + j * 4
    a("v_lshlrev_b32 v%d, 4, v%d" % (vOff, vLane))
    a("s_lshr_b32 s4, s2, 3"); a("s_lshl_b32 s4, s4, 23")
    a("s_and_b32 s5, s2, 7"); a("s_lshl_b32 s5, s5, 20"); a("s_add_u32 s4, s4, s5")
    a("s_lshl_b32 s5, s3, 12"); a("s_add_u32 s4, s4, s5")
    a("s_mov_b32 s6, 0")
    a("s_waitcnt lgkmcnt(0)")
    srd(44, 18, 19, 0x10000000); srd(48, 20, 21, 0x10000000)
    def issue_setup():
        a("s_cmp_lt_u32 s6, 32"); a("s_cselect_b32 s7, s4, 0x%x" % OOB)
        a("s_add_u32 s4, s4, 32768"); a("s_add_u32 s6, s6, 1")
    def issue_grp(r, kv):
        for j in range(4):
            a("buffer_load_dwordx4 %s, v%d, %s, s7 offen offset:%d %s" % (V(buf(r, kv, j), 4), vOff, S4(44 + 4 * kv), j * 1024, cfg.ldflags))
    def issue(r):
        issue_setup(); issue_grp(r, 0); issue_grp(r, 1)
    a("s_barrier")
    stamp(1)
    first = True
    for r in range(cfg.NP):
        issue_setup()
        for kv in range(2):
            if not first and cfg.THR < 63: a("s_waitcnt vmcnt(%d)" % cfg.THR)
            first = False
            issue_grp(r, kv)
    stamp(2)
    a("v_mov_b32 v%d, 0xff800000" % vM); a("v_mov_b32 v%d, 0" % vL)
    for i in range(8): a("v_mov_b32 v%d, 0" % (vAcc + i))
    a("v_and_b32 v%d, 15, v%d" % (vT, vLane)); a("v_lshlrev_b32 v%d, 4, v%d" % (vT, vT))
    a("s_mov_b32 s8, %s" % f32(SCALE)); a("s_mov_b32 s9, %s" % f32(LOG2E)); a("s_mov_b32 s10, 0xffff0000")
    a("s_barrier")
    stamp(3)
    a("ds_read_b128 %s, v%d offset:%d" % (V(vQ, 4), vT, L_Q))
    a("s_waitcnt lgkmcnt(0)")
    def process(r, nk, nv):
        a("s_waitcnt vmcnt(%d)" % nk)
        for i in range(4):
            for j in range(4):
                a("v_dot2_f32_bf16 v%d, v%d, v%d, %s" % (vS + j, buf(r, 0, j) + i, vQ + i, "0" if i == 0 else "v%d" % (vS + j)))
        a("v_add_f32_dpp v%d, v%d, v%d row_ror:8 row_mask:0xf bank_mask:0x3" % (vA, vS + 0, vS + 0))
        a("v_add_f32_dpp v%d, v%d, v%d row_ror:8 row_mask:0xf bank_mask:0x3" % (vB, vS + 1, vS + 1))
        a("v_add_f32_dpp v%d, v%d, v%d row_ror:8 row_mask:0xf bank_mask:0xc" % (vA, vS + 2, vS + 2))
        a("v_add_f32_dpp v%d, v%d, v%d row_ror:8 row_mask:0xf bank_mask:0xc" % (vB, vS + 3, vS + 3))
        a("v_add_f32_dpp v%d, v%d, v%d row_half_mirror row_mask:0xf bank_mask:0x5" % (vC, vA, vA))
        a("v_add_f32_dpp v%d, v%d, v%d row_half_mirror row_mask:0xf bank_mask:0xa" % (vC, vB, vB))
        a("v_add_f32_dpp v%d, v%d, v%d quad_perm:[1,0,3,2] %s" % (vC, vC, vC, DPPF))
        a("v_add_f32_dpp v%d, v%d, v%d quad_perm:[2,3,0,1] %s" % (vC, vC, vC, DPPF))
        a("v_cvt_pk_bf16_f32 v%d, v%d, v%d" % (vC, vC, vC)); a("v_and_b32 v%d, s10, v%d" % (vC, vC))
        a("v_mul_f32 v%d, s8, v%d" % (vC, vC))
        a("v_cvt_pk_bf16_f32 v%d, v%d, v%d" % (vC, vC, vC)); a("v_and_b32 v%d, s10, v%d" % (vC, vC))
        a("v_max_f32_dpp v%d, v%d, v%d row_ror:4 %s" % (vA, vC, vC, DPPF))
        a("v_max_f32_dpp v%d, v%d, v%d row_ror:8 %s" % (vA, vA, vA, DPPF))
        a("v_max_f32 v%d, v%d, v%d" % (vMn, vM, vA))
        a("v_sub_f32 v%d, v%d, v%d" % (vAl, vM, vMn)); a("v_sub_f32 v%d, v%d, v%d" % (vP, vC, vMn))
        a("v_mul_f32 v%d, s9, v%d" % (vAl, vAl)); a("v_mul_f32 v%d, s9, v%d" % (vP, vP))
        a("v_exp_f32 v%d, v%d" % (vAl, vAl)); a("v_exp_f32 v%d, v%d" % (vP, vP))
        a("v_mov_b32 v%d, v%d" % (vM, vMn))
        a("v_fma_f32 v%d, v%d, v%d, v%d" % (vL, vL, vAl, vP))
        for i in range(8): a("v_mul_f32 v%d, v%d, v%d" % (vAcc + i, vAcc + i, vAl))
        a("s_waitcnt vmcnt(%d)" % nv)
        for j in range(4):
            for i in range(4):
                src = buf(r, 1, j) + i
                a("v_lshlrev_b32 v%d, 16, v%d" % (vU + 2 * i, src)); a("v_and_b32 v%d, s10, v%d" % (vU + 2 * i + 1, src))
            for k in range(8):
                a("v_fmac_f32_dpp v%d, v%d, v%d row_newbcast:%d %s" % (vAcc + k, vP, vU + k, 4 * j, DPPF))
    out = list(range(cfg.NP))
    for t in range(cfg.NP):
        n_after = len(out) - 1
        process(t, 8 * n_after + 4, 8 * n_after)
        out.pop(0)
        if t < cfg.R:
            issue(t); out.append(t)
    assert out == list(range(cfg.R)), out
    nloop = (32 - cfg.NP) // cfg.R
    assert nloop * cfg.R == 32 - cfg.NP
    a("s_mov_b32 s11, 0")
    a("L_SLOOP:")
    for r in range(cfg.R):
        process(r, 8 * (cfg.R - 1) + 4, 8 * (cfg.R - 1))
        issue(r)
    a("s_add_u32 s11, s11, 1"); a("s_cmp_lt_u32 s11, %d" % nloop); a("s_cbranch_scc1 L_SLOOP")
    stamp(4)
    a("v_mov_b32 v%d, v%d" % (vA, vM)); a("v_mov_b32 v%d, v%d" % (vB, vM))
    a("v_permlane16_swap_b32 v%d, v%d" % (vA, vB)); a("v_max_f32 v%d, v%d, v%d" % (vA, vA, vB))
    a("v_mov_b32 v%d, v%d" % (vB, vA))
    a("v_permlane32_swap_b32 v%d, v%d" % (vA, vB)); a("v_max_f32 v%d, v%d, v%d" % (vMn, vA, vB))
    a("v_sub_f32 v%d, v%d, v%d" % (vAl, vM, vMn)); a("v_mul_f32 v%d, s9, v%d" % (vAl, vAl)); a("v_exp_f32 v%d, v%d" % (vAl, vAl))
    a("v_mul_f32 v%d, v%d, v%d" % (vL, vL, vAl))
    for i in range(8): a("v_mul_f32 v%d, v%d, v%d" % (vAcc + i, vAcc + i, vAl))
    a("v_add_f32_dpp v%d, v%d, v%d row_ror:4 %s" % (vL, vL, vL, DPPF))
    a("v_add_f32_dpp v%d, v%d, v%d row_ror:8 %s" % (vL, vL, vL, DPPF))
    a("v_mov_b32 v%d, v%d" % (vB, vL)); a("v_permlane16_swap_b32 v%d, v%d" % (vL, vB)); a("v_add_f32 v%d, v%d, v%d" % (vL, vL, vB))
    a("v_mov_b32 v%d, v%d" % (vB, vL)); a("v_permlane32_swap_b32 v%d, v%d" % (vL, vB)); a("v_add_f32 v%d, v%d, v%d" % (vL, vL, vB))
    for p in range(4):
        a("v_permlane32_swap_b32 v%d, v%d" % (vAcc + 2 * p, vAcc + 2 * p + 1))
    for p in range(4):
        a("v_add_f32 v%d, v%d, v%d" % (vAcc + 2 * p, vAcc + 2 * p, vAcc + 2 * p + 1))
    a("v_permlane16_swap_b32 v%d, v%d" % (vAcc + 0, vAcc + 2)); a("v_permlane16_swap_b32 v%d, v%d" % (vAcc + 4, vAcc + 6))
    a("v_add_f32 v%d, v%d, v%d" % (vAcc + 0, vAcc + 0, vAcc + 2)); a("v_add_f32 v%d, v%d, v%d" % (vAcc + 4, vAcc + 4, vAcc + 6))
    a("v_lshrrev_b32 v%d, 4, v%d" % (vA, vLane))
    a("v_and_b32 v%d, 1, v%d" % (vB, vA)); a("v_lshlrev_b32 v%d, 1, v%d" % (vB, vB))
    a("v_lshrrev_b32 v%d, 1, v%d" % (vA, vA)); a("v_or_b32 v%d, v%d, v%d" % (vA, vA, vB))
    a("v_and_b32 v%d, 15, v%d" % (vB, vLane)); a("v_lshl_add_u32 v%d, v%d, 3, v%d" % (vA, vB, vA))
    a("v_lshlrev_b32 v%d, 2, v%d" % (vA, vA))
    a("s_lshl_b32 s12, s3, 9"); a("v_add_u32 v%d, s12, v%d" % (vA, vA))
    a("ds_write_b32 v%d, v%d offset:%d" % (vA, vAcc + 0, L_PART))
    a("ds_write_b32 v%d, v%d offset:%d" % (vA, vAcc + 4, L_PART + 16))
    a("v_mov_b32 v%d, v%d" % (vS, vMn)); a("v_mov_b32 v%d, v%d" % (vS + 1, vL))
    a("s_lshl_b32 s12, s3, 3"); a("v_mov_b32 v%d, s12" % vB)
    a("ds_write_b64 v%d, %s offset:%d" % (vB, V(vS, 2), L_PML))
    a("s_waitcnt lgkmcnt(0)")
    stamp(5)
    stamps_flush_S = True
    if cfg.stamps:
        srd(44, 42, 43, WS_SIZE)
        stamps_flush("s3", S4(44))
    a("s_endpgm")

    a("L_CW:")
    gen_control(a, cfg, stamp, stamps_flush, srd, S4, V, DPPF, bf16_round, wave_allreduce_add)
    a("L_END:")
    a("s_endpgm")
    return a


def gen_control(a, cfg, stamp, stamps_flush, srd, S4, V, DPPF, bf16_round, wave_allreduce_add):
    sSig, sHead, sNon = 4, 5, 6
    WS, DBG, W1, W2, XS = 44, 48, 52, 56, 60
    vLane, vZero, vG16, vTR32, vTR64, vOwnB, vOwn, vX, vActW, vActR, vGa = 1, 2, 3, 4, 5, 6, 7, 8, 12, 13, 14
    wf = cfg.wflags
    OOBS = "0x%x" % OOB
    def oob_unless(dst, src, cond):
        a("v_mov_b32 v35, %s" % OOBS); a("v_cndmask_b32 v%d, v35, v%d, %s" % (dst, src, cond))
    a("s_sub_u32 s3, s3, 8")
    a("s_and_b32 s7, s2, 7"); a("s_lshr_b32 s5, s2, 3")
    a("s_lshr_b32 s8, s5, 2"); a("s_lshl_b32 s8, s8, 3"); a("s_add_u32 s8, s8, s7"); a("s_lshl_b32 s8, s8, 2")
    a("s_and_b32 s9, s5, 3"); a("s_add_u32 s%d, s8, s9" % sSig)
    a("v_mov_b32 v%d, 0" % vZero)
    a("v_lshrrev_b32 v%d, 4, v%d" % (vG16, vLane))
    a("v_and_b32 v32, 15, v%d" % vLane); a("v_lshrrev_b32 v33, 2, v32"); a("v_and_b32 v34, 3, v32")
    a("v_lshl_add_u32 v33, v%d, 3, v33" % vG16)
    a("v_lshlrev_b32 v34, 3, v34")
    a("v_lshl_add_u32 v%d, v33, 5, v34" % vTR32); a("v_lshl_add_u32 v%d, v33, 6, v34" % vTR64)
    a("v_lshlrev_b32 v%d, 4, v%d" % (vG16, vG16))
    a("s_mul_i32 s7, s3, 160"); a("v_lshl_add_u32 v%d, v%d, 2, s7" % (vOwn, vLane))
    a("v_cmp_gt_u32 vcc, 40, v%d" % vLane); a("s_mov_b64 s[14:15], vcc")
    a("v_lshlrev_b32 v33, 1, v%d" % vOwn); oob_unless(vOwnB, 33, "s[14:15]")
    a("s_lshl_b32 s7, s3, 9"); a("v_lshl_add_u32 v%d, v%d, 3, s7" % (vActW, vLane)); a("v_add_u32 v%d, s7, v%d" % (vActR, vG16))
    a("v_lshrrev_b32 v33, 4, v%d" % vOwn); a("v_lshlrev_b32 v33, 7, v33"); a("v_and_b32 v34, 15, v%d" % vOwn); a("v_lshl_add_u32 v33, v34, 2, v33")
    oob_unless(vGa, 33, "s[14:15]")
    a("s_mov_b32 s13, 0xffff0000")
    a("s_waitcnt lgkmcnt(0)")
    srd(WS, 42, 43, WS_SIZE); srd(DBG, 40, 41, 256); srd(W1, 36, 37, 640 * 7680); srd(W2, 22, 23, 640 * 8192)
    vW, vCc, vXa, vXo = 16, 18, 20, 26
    a("buffer_load_dword v%d, v%d, %s, 0 offen sc1" % (vW, vZero, S4(WS)))
    srd(XS, 34, 35, 1280)
    a("buffer_load_dwordx2 %s, v%d, %s, 0 offen" % (V(vCc, 2), vOwnB, S4(XS)))
    a("v_lshrrev_b32 v32, 1, v%d" % vLane); a("v_and_b32 v33, 1, v%d" % vLane); a("v_lshlrev_b32 v33, 4, v33")
    a("s_mov_b32 s7, 7680"); a("v_mul_lo_u32 v28, v32, s7"); a("v_add_u32 v28, v28, v33")
    a("v_lshl_add_u32 v29, v32, 13, v33")
    a("s_mul_i32 s7, s3, %d" % (160 * 7680)); a("s_lshl_b32 s8, s%d, 5" % sSig); a("s_add_u32 s7, s7, s8")
    a("s_cmp_lt_u32 s%d, 240" % sSig); a("s_cselect_b32 s7, s7, %s" % OOBS)
    a("s_mul_i32 s9, s3, 5120")
    for kb in range(5):
        a("s_add_u32 m0, s9, %d" % (L_WM + kb * 1024))
        a("buffer_load_dwordx4 v28, %s, s7 offen %s lds" % (S4(W1), wf))
        if kb < 4: a("s_add_u32 s7, s7, %d" % (32 * 7680))
    srd(XS, 16, 17, 1280)
    a("v_lshlrev_b32 v30, 2, v%d" % vLane)
    for i in range(5): a("buffer_load_dword v%d, v30, %s, 0 offen offset:%d" % (vXa + i, S4(XS), 256 * i))
    a("buffer_load_dwordx2 %s, v%d, %s, 0 offen" % (V(vXo, 2), vOwnB, S4(XS)))
    a("s_mul_i32 s7, s3, %d" % (160 * 8192)); a("s_add_u32 s7, s7, s8")
    for kb in range(5):
        a("s_add_u32 m0, s9, %d" % (L_WQ + kb * 1024))
        a("buffer_load_dwordx4 v29, %s, s7 offen %s lds" % (S4(W2), wf))
        if kb < 4: a("s_add_u32 s7, s7, %d" % (32 * 8192))
    a("s_and_b32 s7, s2, 7"); a("s_lshr_b32 s8, s2, 3")
    a("s_mov_b32 s10, 3"); a("s_mov_b32 s11, 0"); a("s_mov_b32 s12, 0")
    lab_m, lab_f, lab_d = a.newlabel("L_rm"), a.newlabel("L_rf"), a.newlabel("L_rd")
    a("s_cmp_ge_u32 s2, 160"); a("s_cbranch_scc1 %s" % lab_m)
    a("s_lshr_b32 s9, s8, 1"); a("s_lshl_b32 s9, s9, 3"); a("s_add_u32 s9, s9, s7")
    a("s_mul_i32 s11, s9, 6554"); a("s_lshr_b32 s11, s11, 16")
    a("s_mul_i32 s12, s11, 10"); a("s_sub_u32 s12, s9, s12"); a("s_lshl_b32 s12, s12, 1")
    a("s_and_b32 s9, s8, 1"); a("s_add_u32 s12, s12, s9")
    a("s_mov_b32 s10, 0"); a("s_branch %s" % lab_d)
    a.label(lab_m)
    a("s_cmp_ge_u32 s2, 224"); a("s_cbranch_scc1 %s" % lab_f)
    a("s_sub_u32 s8, s8, 20"); a("s_lshr_b32 s9, s8, 1"); a("s_lshl_b32 s9, s9, 3"); a("s_add_u32 s9, s9, s7")
    a("s_cmp_ge_u32 s9, 27"); a("s_cbranch_scc1 %s" % lab_d)
    a("s_lshl_b32 s9, s9, 1"); a("s_and_b32 s8, s8, 1"); a("s_add_u32 s11, s9, s8")
    a("s_mov_b32 s10, 1"); a("s_branch %s" % lab_d)
    a.label(lab_f)
    a("s_sub_u32 s9, s2, 224"); a("s_cmp_ge_u32 s9, 20"); a("s_cbranch_scc1 %s" % lab_d)
    a("s_mov_b32 s11, s9"); a("s_mov_b32 s10, 2")
    a.label(lab_d)
    for i in range(4): a("v_mov_b32 v%d, -1" % (36 + i))
    a("v_lshlrev_b32 v30, 4, v%d" % vLane)
    a("s_lshl_b32 s7, s2, 10"); a("s_add_u32 s7, s7, %d" % WS_REC)
    a("s_mul_i32 s9, s11, 2560"); a("s_lshl_b32 s8, s12, 7"); a("s_add_u32 s9, s9, s8"); a("s_add_u32 s9, s9, %d" % WS_Y1)
    a("s_cmp_eq_u32 s3, 1"); a("s_cselect_b32 s7, s9, s7")
    a("s_cmp_eq_u32 s10, 0"); a("s_cselect_b32 s9, 8, 0")
    a("s_cmp_eq_u32 s3, 1"); a("s_cselect_b32 s8, s9, 33")
    a("s_cmp_ge_u32 s3, 2"); a("s_cselect_b32 s8, 0, s8")
    a("v_cmp_gt_u32 vcc, s8, v%d" % vLane); oob_unless(31, 30, "vcc")
    a("buffer_store_dwordx4 v[36:39], v31, %s, s7 offen sc1" % S4(WS))
    a("s_mul_i32 s7, s11, 2560"); a("s_mul_i32 s8, s3, 640"); a("s_add_u32 s7, s7, s8"); a("s_add_u32 s7, s7, %d" % WS_Y2)
    a("s_cmp_eq_u32 s10, 1"); a("s_cselect_b32 s8, 40, 0")
    a("v_cmp_gt_u32 vcc, s8, v%d" % vLane); oob_unless(31, 30, "vcc")
    a("buffer_store_dwordx4 v[36:39], v31, %s, s7 offen sc1" % S4(WS))
    a("s_lshl_b32 s7, s3, 10"); a("v_add_u32 v31, s7, v30")
    a("ds_write_b128 v31, v[36:39] offset:%d" % L_X)
    a("v_and_b32 v31, 15, v%d" % vLane); a("v_lshlrev_b32 v31, 4, v31"); a("s_lshl_b32 s7, s3, 8"); a("v_add_u32 v31, s7, v31")
    a("ds_write_b128 v31, v[36:39] offset:%d" % (L_X + 4096))
    a("s_waitcnt lgkmcnt(0)")
    stamp(1)
    a("s_barrier")
    NV = 20
    a("s_waitcnt vmcnt(%d)" % (NV - 2))
    a("v_readfirstlane_b32 s%d, v%d" % (sNon, vW))
    a("s_mul_i32 s%d, s%d, 0x9E3779B1" % (sNon, sNon)); a("s_add_u32 s%d, s%d, 0x7F4A7C15" % (sNon, sNon))
    def unpack2(dst, src):
        a("v_lshlrev_b32 v%d, 16, v%d" % (dst, src)); a("v_and_b32 v%d, s13, v%d" % (dst + 1, src))
    unpack2(28, vCc); unpack2(30, vCc + 1)
    for i in range(4): a("v_mul_f32 v%d, %s, v%d" % (32 + i, f32(-LOG2E), 28 + i))
    for i in range(4): a("v_exp_f32 v%d, v%d" % (32 + i, 32 + i))
    for i in range(4): a("v_add_f32 v%d, 1.0, v%d" % (32 + i, 32 + i))
    for i in range(4): a("v_rcp_f32 v%d, v%d" % (32 + i, 32 + i))
    for i in range(4): a("v_mul_f32 v%d, v%d, v%d" % (28 + i, 28 + i, 32 + i))
    a("v_cvt_pk_bf16_f32 v28, v28, v29"); a("v_cvt_pk_bf16_f32 v29, v30, v31")
    a("ds_write_b64 v%d, v[28:29] offset:%d" % (vActW, L_ACT))
    vB = 40
    for kb in range(5): a("ds_read_b128 %s, v%d offset:%d" % (V(vB + 4 * kb, 4), vActR, L_ACT + kb * 64))
    stamp(2)
    vWf = 72
    a("s_mul_i32 s7, s3, 5120"); a("v_add_u32 v32, s7, v%d" % vTR32)
    a("s_waitcnt vmcnt(%d)" % (NV - 7))
    for kb in range(5):
        a("ds_read_b64_tr_b16 %s, v32 offset:%d" % (V(vWf + 4 * kb, 2), L_WM + kb * 1024))
        a("ds_read_b64_tr_b16 %s, v32 offset:%d" % (V(vWf + 4 * kb + 2, 2), L_WM + kb * 1024 + 128))
    vAcc = 36
    a("s_waitcnt lgkmcnt(0)")
    def mfma(acc, A, B, first):
        a("v_mfma_f32_16x16x32_bf16 %s, %s, %s, %s" % (V(acc, 4), V(A, 4), V(B, 4), "0" if first else V(acc, 4)))
    for kb in range(5): mfma(vAcc, vWf + 4 * kb, vB + 4 * kb, kb == 0)
    def exec4(on):
        if on: a("s_mov_b32 exec_lo, 0x00010001"); a("s_mov_b32 exec_hi, 0x00010001")
        else: a("s_mov_b64 exec, -1")
    def xwrite(base, per_wave, regs):
        a("s_mul_i32 s7, s3, %d" % per_wave); a("v_add_u32 v33, s7, v%d" % vG16)
        exec4(True)
        for k, r in enumerate(regs): a("ds_write_b128 v33, %s offset:%d" % (V(r, 4), base + 64 * k))
        exec4(False)
    def spin_begin(name):
        a("s_mov_b32 s9, 0"); a.label(name)
        a("s_add_u32 s9, s9, 1"); a("s_cmp_gt_u32 s9, %d" % cfg.spin_limit); a("s_cbranch_scc1 L_BAIL")
    def umax(regs, dst):
        regs = list(regs)
        a("v_max_u32 v%d, v%d, v%d" % (dst, regs[0], regs[1])); regs = regs[2:]
        while len(regs) >= 2:
            a("v_max3_u32 v%d, v%d, v%d, v%d" % (dst, dst, regs[0], regs[1])); regs = regs[2:]
        if regs: a("v_max_u32 v%d, v%d, v%d" % (dst, dst, regs[0]))
    def spin_until_no_sentinel(name, regs, t):
        umax(regs, t); a("v_cmp_eq_u32 vcc, -1, v%d" % t); a("s_cbranch_vccnz %s" % name)
    def xsum(name, base, stride, nl, dst):
        a("v_and_b32 v33, %d, v%d" % (nl - 1, vLane)); a("v_lshlrev_b32 v33, 4, v33")
        spin_begin(name)
        for w in range(4): a("ds_read_b128 %s, v33 offset:%d" % (V(dst + 4 * w, 4), base + stride * w))
        a("s_waitcnt lgkmcnt(0)")
        spin_until_no_sentinel(name, range(dst, dst + 16), 34)
        for i in range(4):
            a("v_add_f32 v%d, v%d, v%d" % (dst + i, dst + i, dst + 4 + i)); a("v_add_f32 v%d, v%d, v%d" % (dst + 8 + i, dst + 8 + i, dst + 12 + i))
        for i in range(4): a("v_add_f32 v%d, v%d, v%d" % (dst + i, dst + i, dst + 8 + i))
    def publish_granules(src, slot_base, nlanes_code):
        a("v_cvt_pk_bf16_f32 v%d, v%d, v%d" % (src, src, src + 1)); a("v_cvt_pk_bf16_f32 v%d, v%d, v%d" % (src + 2, src + 2, src + 3))
        a("v_mov_b32 v%d, s%d" % (src + 1, sNon)); a("v_mov_b32 v%d, s%d" % (src + 3, sNon))
        a("s_lshl_b32 s7, s%d, 7" % sSig); a("s_add_u32 s7, s7, %d" % slot_base)
        nlanes_code()
        a("v_lshlrev_b32 v33, 4, v%d" % vLane); a("v_cmp_gt_u32 vcc, s8, v%d" % vLane); oob_unless(33, 33, "vcc")
        a("buffer_store_dwordx4 %s, v33, %s, s7 offen sc1" % (V(src, 4), S4(WS)))
    xwrite(L_X1, 64, [vAcc])
    lab = a.newlabel("L_nm")
    a("s_cmp_lg_u32 s3, 0"); a("s_cbranch_scc1 %s" % lab)
    xsum(a.newlabel("L_sx1"), L_X1, 64, 4, 92)
    def okm(): a("s_cmp_lt_u32 s%d, 240" % sSig); a("s_cselect_b32 s8, 4, 0")
    publish_granules(92, WS_MOD, okm)
    a.label(lab)
    stamp(3)
    a("s_waitcnt vmcnt(7)")
    unpack2(vX, vXo); unpack2(vX + 2, vXo + 1)
    vE = 60
    for i in range(5): unpack2(vE + 2 * i, vXa + i)
    def ln_stats(vals, nmask_last, vmean, vden, t):
        first = True
        for k, x in enumerate(vals):
            src = x
            if nmask_last and k >= len(vals) - nmask_last[0]:
                a("v_cndmask_b32 v%d, 0, v%d, %s" % (t, x, nmask_last[1])); src = t
            if first: a("v_mov_b32 v%d, v%d" % (vmean, src)); first = False
            else: a("v_add_f32 v%d, v%d, v%d" % (vmean, vmean, src))
        wave_allreduce_add("v%d" % vmean, "v%d" % t)
        a("v_mul_f32 v%d, %s, v%d" % (vmean, f32(1.0 / 640), vmean))
        first = True
        for k, x in enumerate(vals):
            a("v_sub_f32 v%d, v%d, v%d" % (t, x, vmean))
            if nmask_last and k >= len(vals) - nmask_last[0]:
                a("v_cndmask_b32 v%d, 0, v%d, %s" % (t, t, nmask_last[1]))
            if first: a("v_mul_f32 v%d, v%d, v%d" % (vden, t, t)); first = False
            else: a("v_fma_f32 v%d, v%d, v%d, v%d" % (vden, t, t, vden))
        wave_allreduce_add("v%d" % vden, "v%d" % t)
        a("v_mul_f32 v%d, %s, v%d" % (vden, f32(1.0 / 640), vden))
        bf16_round("v%d" % vden, "v%d" % vden)
        a("v_add_f32 v%d, %s, v%d" % (vden, f32(1e-5), vden)); bf16_round("v%d" % vden, "v%d" % vden)
        a("v_sqrt_f32 v%d, v%d" % (vden, vden)); bf16_round("v%d" % vden, "v%d" % vden)
        bf16_round("v%d" % vmean, "v%d" % vmean)
    def ln_apply(dst, src, vmean, vden, t):
        a("v_rcp_f32 v%d, v%d" % (t, vden))
        for i in range(4):
            a("v_sub_f32 v%d, v%d, v%d" % (dst + i, src + i, vmean)); bf16_round("v%d" % (dst + i), "v%d" % (dst + i))
            a("v_mul_f32 v%d, v%d, v%d" % (t + 1, dst + i, t))
            a("v_fma_f32 v%d, -v%d, v%d, v%d" % (t + 2, t + 1, vden, dst + i))
            a("v_fma_f32 v%d, v%d, v%d, v%d" % (dst + i, t + 2, t, t + 1))
            bf16_round("v%d" % (dst + i), "v%d" % (dst + i))
    vLN = 24
    ln_stats([vE + i for i in range(10)], None, 28, 29, 32)
    ln_apply(vLN, vX, 28, 29, 32)
    a("s_mul_i32 s7, s3, 5120"); a("v_add_u32 v32, s7, v%d" % vTR32)
    a("s_waitcnt vmcnt(2)")
    for kb in range(5):
        a("ds_read_b64_tr_b16 %s, v32 offset:%d" % (V(vWf + 4 * kb, 2), L_WQ + kb * 1024))
        a("ds_read_b64_tr_b16 %s, v32 offset:%d" % (V(vWf + 4 * kb + 2, 2), L_WQ + kb * 1024 + 128))
    stamp(4)
    def poll_mod(name, specs, vaddr, mask):
        spin_begin(name)
        for dst, col in specs:
            a("s_mov_b32 s7, %d" % (WS_MOD + (col >> 4) * 128))
            a("buffer_load_dwordx4 %s, v%d, %s, s7 offen sc1" % (V(dst, 4), vaddr, S4(WS)))
        a("s_waitcnt vmcnt(0)")
        first = True
        for dst, col in specs:
            for t in (1, 3):
                if first: a("v_xor_b32 v34, s%d, v%d" % (sNon, dst + t)); first = False
                else: a("v_xor_b32 v35, s%d, v%d" % (sNon, dst + t)); a("v_or_b32 v34, v34, v35")
        a("v_cmp_ne_u32 vcc, 0, v34"); a("s_and_b64 vcc, vcc, %s" % mask)
        a("s_cbranch_vccnz %s" % name)
    vSa, vCa = 92, 96
    poll_mod(a.newlabel("L_pm"), [(vSa, 0), (vCa, 640)], vGa, "s[14:15]")
    stamp(5)
    def modulate(dst, ln, vca, vsa, t):
        unpack2(t, vca); unpack2(t + 2, vca + 2); unpack2(t + 4, vsa); unpack2(t + 6, vsa + 2)
        for i in range(4):
            a("v_add_f32 v%d, 1.0, v%d" % (t + i, t + i)); bf16_round("v%d" % (t + i), "v%d" % (t + i))
            a("v_mul_f32 v%d, v%d, v%d" % (dst + i, ln + i, t + i)); bf16_round("v%d" % (dst + i), "v%d" % (dst + i))
            a("v_add_f32 v%d, v%d, v%d" % (dst + i, dst + i, t + 4 + i))
    modulate(108, vLN, vCa, vSa, 100)
    a("v_cvt_pk_bf16_f32 v28, v108, v109"); a("v_cvt_pk_bf16_f32 v29, v110, v111")
    a("ds_write_b64 v%d, v[28:29] offset:%d" % (vActW, L_ACT))
    for kb in range(5): a("ds_read_b128 %s, v%d offset:%d" % (V(vB + 4 * kb, 4), vActR, L_ACT + kb * 64))
    a("s_waitcnt lgkmcnt(0)")
    for kb in range(5): mfma(vAcc, vWf + 4 * kb, vB + 4 * kb, kb == 0)
    xwrite(L_X2, 64, [vAcc])
    lab = a.newlabel("L_nq")
    a("s_cmp_lg_u32 s3, 0"); a("s_cbranch_scc1 %s" % lab)
    xsum(a.newlabel("L_sx2"), L_X2, 64, 4, 92)
    def okq(): a("s_mov_b32 s8, 4")
    publish_granules(92, WS_Q, okq)
    a("v_mov_b32 v34, 1"); a("v_cmp_eq_u32 vcc, 0, v%d" % vLane); oob_unless(33, vZero, "vcc")
    a("buffer_atomic_add v34, v33, %s, 0 offen" % S4(DBG))
    stamp(6)
    a("v_lshrrev_b32 v33, 3, v%d" % vLane); a("v_lshlrev_b32 v33, 7, v33"); a("v_and_b32 v34, 7, v%d" % vLane); a("v_lshl_add_u32 v33, v34, 3, v33")
    a("s_lshl_b32 s8, s%d, 10" % sHead); a("s_add_u32 s8, s8, %d" % WS_Q)
    nm = a.newlabel("L_pq")
    spin_begin(nm)
    a("buffer_load_dwordx2 v[92:93], v33, %s, s8 offen sc1" % S4(WS))
    a("s_waitcnt vmcnt(0)")
    a("v_cmp_ne_u32 vcc, s%d, v93" % sNon); a("s_cbranch_vccnz %s" % nm)
    a("v_lshlrev_b32 v33, 2, v%d" % vLane)
    a("ds_write_b32 v33, v92 offset:%d" % L_Q)
    a("s_waitcnt lgkmcnt(0)")
    a.label(lab)
    stamp(7)
    a("s_barrier")

    lab = a.newlabel("L_stay")
    a("s_cmp_eq_u32 s3, 0"); a("s_cbranch_scc1 %s" % lab)
    a("s_cmp_eq_u32 s10, 3"); a("s_cbranch_scc1 L_CEND")
    a("s_cmp_lg_u32 s10, 2"); a("s_cbranch_scc1 %s" % lab)
    a("s_cmp_ge_u32 s3, 2"); a("s_cbranch_scc1 L_CEND")
    a.label(lab)
    nm = a.newlabel("L_pc")
    spin_begin(nm)
    a("buffer_load_dword v33, v%d, %s, 0 offen sc1" % (vZero, S4(DBG)))
    a("s_waitcnt vmcnt(0)")
    a("v_cmp_gt_u32 vcc, 256, v33"); a("s_cbranch_vccnz %s" % nm)
    a("s_cmp_eq_u32 s10, 0"); a("s_cbranch_scc1 L_PRE_WO")
    a("s_cmp_eq_u32 s10, 1"); a("s_cbranch_scc1 L_PRE_MLP")
    a("s_cmp_eq_u32 s10, 2"); a("s_cbranch_scc1 L_PRE_FIN")
    a("s_branch L_T1")
    vF = 40
    a.label("L_PRE_WO")
    srd(W1, 24, 25, 4096 * 1280)
    a("v_lshrrev_b32 v33, 2, v%d" % vLane); a("s_mov_b32 s7, 1280"); a("v_mul_lo_u32 v33, v33, s7"); a("v_and_b32 v34, 3, v%d" % vLane); a("v_lshl_add_u32 v33, v34, 4, v33")
    a("s_lshl_b32 s7, s11, 2"); a("s_add_u32 s7, s7, s3"); a("s_mul_i32 s7, s7, %d" % (128 * 1280)); a("s_lshl_b32 s8, s12, 6"); a("s_add_u32 s7, s7, s8")
    a("s_lshl_b32 s9, s3, 13")
    for i in range(8):
        a("s_add_u32 m0, s9, %d" % (L_TW + i * 1024))
        a("buffer_load_dwordx4 v33, %s, s7 offen %s lds" % (S4(W1), wf))
        if i < 7: a("s_add_u32 s7, s7, %d" % (16 * 1280))
    a("v_add_u32 v32, s9, v%d" % vTR64)
    a("s_waitcnt vmcnt(0)")
    for cgp in range(2):
        for kb in range(4):
            r = vF + (cgp * 4 + kb) * 4
            a("ds_read_b64_tr_b16 %s, v32 offset:%d" % (V(r, 2), L_TW + kb * 2048 + cgp * 32))
            a("ds_read_b64_tr_b16 %s, v32 offset:%d" % (V(r + 2, 2), L_TW + kb * 2048 + cgp * 32 + 256))
        a("s_waitcnt lgkmcnt(0)")
    a("s_branch L_T1")
    a.label("L_PRE_MLP")
    vGaG, vSb, vCb = 16, 20, 24
    poll_mod(a.newlabel("L_pm2"), [(vGaG, 1280), (vSb, 1920), (vCb, 2560)], vGa, "s[14:15]")
    srd(W1, 28, 29, 640 * 3456); srd(W2, 30, 31, 640 * 3456)
    a("v_lshrrev_b32 v33, 2, v%d" % vLane); a("s_mov_b32 s7, 3456"); a("v_mul_lo_u32 v33, v33, s7"); a("v_and_b32 v34, 3, v%d" % vLane); a("v_lshl_add_u32 v33, v34, 4, v33")
    a("s_mul_i32 s7, s3, %d" % (160 * 3456)); a("s_lshl_b32 s8, s11, 6"); a("s_add_u32 s7, s7, s8")
    a("s_mul_i32 s9, s3, 30720")
    for i in range(10):
        a("s_add_u32 m0, s9, %d" % (L_TW + i * 1024))
        a("buffer_load_dwordx4 v33, %s, s7 offen %s lds" % (S4(W1), wf))
        a("s_add_u32 m0, s9, %d" % (L_TW + 10240 + i * 1024))
        a("buffer_load_dwordx4 v33, %s, s7 offen %s lds" % (S4(W2), wf))
        if i < 9: a("s_add_u32 s7, s7, %d" % (16 * 3456))
    srd(W1, 32, 33, 1728 * 1280)
    a("v_lshrrev_b32 v33, 1, v%d" % vLane); a("s_mov_b32 s7, 1280"); a("v_mul_lo_u32 v33, v33, s7"); a("v_and_b32 v34, 1, v%d" % vLane); a("v_lshl_add_u32 v33, v34, 4, v33")
    a("s_mul_i32 s7, s11, %d" % (32 * 1280)); a("s_mul_i32 s8, s3, 320"); a("s_add_u32 s7, s7, s8")
    for i in range(10):
        a("s_add_u32 m0, s9, %d" % (L_TW + 20480 + i * 1024))
        a("buffer_load_dwordx4 v33, %s, s7 offen %s lds" % (S4(W1), wf))
        if i < 9: a("s_add_u32 s7, s7, 32")
    a("v_add_u32 v32, s9, v%d" % vTR64); a("v_add_u32 v15, s9, v%d" % vTR32)
    a("s_waitcnt vmcnt(0)")
    for m in range(2):
        for cgp in range(2):
            for kb in range(5):
                r = vF + m * 40 + (cgp * 5 + kb) * 4
                a("ds_read_b64_tr_b16 %s, v32 offset:%d" % (V(r, 2), L_TW + m * 10240 + kb * 2048 + cgp * 32))
                a("ds_read_b64_tr_b16 %s, v32 offset:%d" % (V(r + 2, 2), L_TW + m * 10240 + kb * 2048 + cgp * 32 + 256))
            a("s_waitcnt lgkmcnt(0)")
    a("s_branch L_T1")
    a.label("L_PRE_FIN")
    a("s_lshl_b32 s11, s11, 1"); a("s_add_u32 s11, s11, s3")
    a("v_and_b32 v15, 15, v%d" % vLane); a("v_lshrrev_b32 v33, 1, v15"); a("v_lshlrev_b32 v33, 3, v33"); a("s_lshl_b32 s7, s11, 7"); a("v_add_u32 v33, s7, v33")
    nm = a.newlabel("L_pm3")
    spin_begin(nm)
    a("s_mov_b32 s7, %d" % (WS_MOD + (1280 >> 4) * 128)); a("buffer_load_dwordx2 v[16:17], v33, %s, s7 offen sc1" % S4(WS))
    a("s_mov_b32 s7, %d" % (WS_MOD + (3200 >> 4) * 128)); a("buffer_load_dwordx2 v[18:19], v33, %s, s7 offen sc1" % S4(WS))
    a("s_waitcnt vmcnt(0)")
    a("v_xor_b32 v34, s%d, v17" % sNon); a("v_xor_b32 v35, s%d, v19" % sNon); a("v_or_b32 v34, v34, v35")
    a("v_cmp_ne_u32 vcc, 0, v34"); a("s_cbranch_vccnz %s" % nm)
    a("v_and_b32 v34, 1, v15"); a("v_cmp_eq_u32 vcc, 1, v34")
    for r in (16, 18):
        a("v_lshlrev_b32 v34, 16, v%d" % r); a("v_and_b32 v%d, s13, v%d" % (r, r)); a("v_cndmask_b32 v%d, v34, v%d, vcc" % (r, r))
    srd(XS, 16, 17, 1280)
    a("s_lshl_b32 s7, s11, 5"); a("v_lshlrev_b32 v34, 1, v15")
    a("buffer_load_ushort v20, v34, %s, s7 offen" % S4(XS)); a("s_waitcnt vmcnt(0)"); a("v_lshlrev_b32 v20, 16, v20")

    a.label("L_T1")
    stamp(8)
    a("s_barrier")
    stamp(9)
    lab = a.newlabel("L_noT1")
    a("s_cmp_lg_u32 s3, 0"); a("s_cbranch_scc1 %s" % lab)
    oi = [120, 124, 128, 132]
    a("v_and_b32 v33, 7, v%d" % vLane); a("v_lshlrev_b32 v33, 3, v33")
    a("ds_read_b64 v[34:35], v33 offset:%d" % L_PML)
    a("v_and_b32 v33, 31, v%d" % vLane); a("v_lshlrev_b32 v33, 4, v33"); a("v_lshrrev_b32 v32, 5, v%d" % vLane); a("v_lshl_add_u32 v33, v32, 11, v33")
    for i in range(4): a("ds_read_b128 %s, v33 offset:%d" % (V(oi[i], 4), L_PART + i * 512))
    a("s_mov_b32 s8, %s" % f32(LOG2E))
    a("s_waitcnt lgkmcnt(4)")
    def combine8(vMl, oi, tA, tB, tC, normalize):
        a("v_max_f32_dpp v%d, v%d, v%d quad_perm:[1,0,3,2] %s" % (tA, vMl, vMl, DPPF))
        a("v_max_f32_dpp v%d, v%d, v%d quad_perm:[2,3,0,1] %s" % (tA, tA, tA, DPPF))
        a("v_max_f32_dpp v%d, v%d, v%d row_half_mirror %s" % (tA, tA, tA, DPPF))
        a("v_sub_f32 v%d, v%d, v%d" % (tC, vMl, tA)); a("v_mul_f32 v%d, s8, v%d" % (tC, tC)); a("v_exp_f32 v%d, v%d" % (tC, tC))
        a("v_mul_f32 v%d, v%d, v%d" % (tB, tC, vMl + 1))
        a("v_add_f32_dpp v%d, v%d, v%d quad_perm:[1,0,3,2] %s" % (tB, tB, tB, DPPF))
        a("v_add_f32_dpp v%d, v%d, v%d quad_perm:[2,3,0,1] %s" % (tB, tB, tB, DPPF))
        a("v_add_f32_dpp v%d, v%d, v%d row_half_mirror %s" % (tB, tB, tB, DPPF))
        if normalize:
            a("v_rcp_f32 v%d, v%d" % (vMl, tB))
            a("v_mul_f32 v%d, v%d, v%d" % (vMl + 1, tC, vMl))
            a("v_fma_f32 v%d, -v%d, v%d, v%d" % (tA, vMl + 1, tB, tC))
            a("v_fma_f32 v%d, v%d, v%d, v%d" % (tC, tA, vMl, vMl + 1))
        else:
            a("s_waitcnt lgkmcnt(0)")
        for i in range(4):
            a("v_mov_b32_dpp v%d, v%d row_newbcast:%d row_mask:0x3 bank_mask:0xf" % (vMl, tC, i))
            a("v_mov_b32_dpp v%d, v%d row_newbcast:%d row_mask:0xc bank_mask:0xf" % (vMl, tC, i + 4))
            for k in range(4):
                if i == 0: a("v_mul_f32 v%d, v%d, v%d" % (oi[0] + k, oi[0] + k, vMl))
                else: a("v_fma_f32 v%d, v%d, v%d, v%d" % (oi[0] + k, oi[i] + k, vMl, oi[0] + k))
    combine8(34, oi, 36, 37, 38, False)
    for k in range(4): a("v_mov_b32 v%d, v%d" % (oi[1] + k, oi[0] + k))
    for k in range(4): a("v_permlane32_swap_b32 v%d, v%d" % (oi[0] + k, oi[1] + k))
    for k in range(4): a("v_add_f32 v%d, v%d, v%d" % (oi[0] + k, oi[0] + k, oi[1] + k))
    a("v_cmp_gt_u32 vcc, 32, v%d" % vLane)
    a("v_cndmask_b32 v%d, v36, v%d, vcc" % (oi[0], oi[0])); a("v_cndmask_b32 v%d, v37, v%d, vcc" % (oi[0] + 1, oi[0] + 1))
    a("v_lshlrev_b32 v33, 4, v%d" % vLane); a("v_cmp_gt_u32 vcc, 33, v%d" % vLane); oob_unless(33, 33, "vcc")
    a("s_lshl_b32 s7, s2, 10"); a("s_add_u32 s7, s7, %d" % WS_REC)
    a("buffer_store_dwordx4 %s, v33, %s, s7 offen sc1" % (V(oi[0], 4), S4(WS)))
    a.label(lab)
    stamp(10)
    a("s_cmp_eq_u32 s10, 0"); a("s_cbranch_scc1 L_T2")
    a("s_cmp_eq_u32 s10, 3"); a("s_cbranch_scc1 L_CEND")
    def poll_ml(head_sgpr, name, sleep):
        a("v_and_b32 v33, 7, v%d" % vLane); a("v_lshlrev_b32 v33, 10, v33")
        a("s_lshl_b32 s8, %s, 13" % head_sgpr); a("s_add_u32 s8, s8, %d" % (WS_REC + 512))
        spin_begin(name)
        if sleep: a("s_sleep %d" % sleep)
        a("buffer_load_dwordx2 v[34:35], v33, %s, s8 offen sc1" % S4(WS))
        a("s_waitcnt vmcnt(0)")
        a("v_max_u32 v32, v34, v35"); a("v_cmp_eq_u32 vcc, -1, v32"); a("s_cbranch_vccnz %s" % name)
    poll_ml("s%d" % sHead, a.newlabel("L_gate"), 2)
    a("s_cmp_eq_u32 s10, 1"); a("s_cbranch_scc1 L_T3")
    a("s_branch L_T4")

    a.label("L_T2")
    a("s_lshl_b32 s4, s11, 2"); a("s_add_u32 s4, s4, s3")
    poll_ml("s4", a.newlabel("L_pml"), 1)
    stamp(11)
    oi = [120, 124, 128, 132]
    a("v_and_b32 v33, 31, v%d" % vLane); a("v_lshlrev_b32 v33, 4, v33"); a("v_lshrrev_b32 v32, 5, v%d" % vLane); a("v_lshl_add_u32 v33, v32, 12, v33")
    a("s_lshl_b32 s8, s4, 13"); a("s_add_u32 s8, s8, %d" % WS_REC)
    nm = a.newlabel("L_po")
    spin_begin(nm)
    for i in range(4): a("buffer_load_dwordx4 %s, v33, %s, s8 offen offset:%d sc1" % (V(oi[i], 4), S4(WS), i * 1024))
    a("s_waitcnt vmcnt(0)")
    spin_until_no_sentinel(nm, range(120, 136), 32)
    a("s_mov_b32 s8, %s" % f32(LOG2E))
    combine8(34, oi, 36, 37, 38, True)
    a("v_permlane32_swap_b32 v%d, v%d" % (oi[0] + 0, oi[0] + 2)); a("v_permlane32_swap_b32 v%d, v%d" % (oi[0] + 1, oi[0] + 3))
    a("v_add_f32 v36, v%d, v%d" % (oi[0] + 0, oi[0] + 2)); a("v_add_f32 v37, v%d, v%d" % (oi[0] + 1, oi[0] + 3))
    a("v_cvt_pk_bf16_f32 v36, v36, v37")
    a("v_and_b32 v33, 31, v%d" % vLane); a("v_lshlrev_b32 v33, 3, v33"); a("v_lshrrev_b32 v37, 5, v%d" % vLane); a("v_lshl_add_u32 v33, v37, 2, v33")
    a("s_lshl_b32 s7, s3, 9"); a("v_add_u32 v33, s7, v33")
    a("ds_write_b32 v33, v36 offset:%d" % L_ACT)
    vB2 = 136
    for kb in range(4): a("ds_read_b128 %s, v%d offset:%d" % (V(vB2 + 4 * kb, 4), vActR, L_ACT + kb * 64))
    a("s_waitcnt lgkmcnt(0)")
    for kb in range(4):
        for cgp in range(2): mfma(152 + 4 * cgp, vF + (cgp * 4 + kb) * 4, vB2 + 4 * kb, kb == 0)
    xwrite(L_X3, 128, [152, 156])
    a("s_cmp_lg_u32 s3, 0"); a("s_cbranch_scc1 L_CEND")
    xsum(a.newlabel("L_sx3"), L_X3, 128, 8, 120)
    a("s_mul_i32 s7, s11, 2560"); a("s_lshl_b32 s8, s12, 7"); a("s_add_u32 s7, s7, s8"); a("s_add_u32 s7, s7, %d" % WS_Y1)
    a("v_lshlrev_b32 v33, 4, v%d" % vLane); a("v_cmp_gt_u32 vcc, 8, v%d" % vLane); oob_unless(33, 33, "vcc")
    a("buffer_store_dwordx4 v[120:123], v33, %s, s7 offen sc1" % S4(WS))
    stamp(12)
    a("s_branch L_CEND")

    def tree8(base, stride, k):
        r = [base + i * stride + k for i in range(8)]
        for x, y in ((0, 1), (2, 3), (4, 5), (6, 7), (0, 2), (4, 6), (0, 4)):
            a("v_add_f32 v%d, v%d, v%d" % (r[x], r[x], r[y]))
    a.label("L_T3")
    stamp(11)
    a("v_lshlrev_b32 v33, 2, v%d" % vOwn); oob_unless(33, 33, "s[14:15]")
    nm = a.newlabel("L_py1")
    spin_begin(nm)
    for r in range(8):
        a("s_mov_b32 s7, %d" % (WS_Y1 + r * 2560))
        a("buffer_load_dwordx4 %s, v33, %s, s7 offen sc1" % (V(120 + 4 * r, 4), S4(WS)))
    a("s_waitcnt vmcnt(0)")
    spin_until_no_sentinel(nm, range(120, 152), 32)
    stamp(12)
    unpack2(152, vGaG); unpack2(154, vGaG + 2)
    vX1 = 28
    for k in range(4):
        tree8(120, 4, k)
        bf16_round("v%d" % (120 + k), "v%d" % (120 + k))
        a("v_mul_f32 v%d, v%d, v%d" % (120 + k, 152 + k, 120 + k)); bf16_round("v%d" % (120 + k), "v%d" % (120 + k))
        a("v_add_f32 v%d, v%d, v%d" % (vX1 + k, vX + k, 120 + k)); bf16_round("v%d" % (vX1 + k), "v%d" % (vX1 + k))
    a("v_lshlrev_b32 v33, 2, v%d" % vOwn)
    a("s_mov_b64 exec, s[14:15]")
    a("ds_write_b128 v33, %s offset:%d" % (V(vX1, 4), L_X4))
    a("s_mov_b64 exec, -1")
    a("v_lshlrev_b32 v33, 4, v%d" % vLane); a("v_and_b32 v32, 31, v%d" % vLane); a("v_lshlrev_b32 v32, 4, v32")
    a("v_cmp_gt_u32 vcc, 32, v%d" % vLane); a("s_mov_b64 s[60:61], vcc")
    nm = a.newlabel("L_sx4")
    spin_begin(nm)
    a("ds_read_b128 v[120:123], v33 offset:%d" % L_X4); a("ds_read_b128 v[124:127], v33 offset:%d" % (L_X4 + 1024))
    a("ds_read_b128 v[128:131], v32 offset:%d" % (L_X4 + 2048))
    a("s_waitcnt lgkmcnt(0)")
    spin_until_no_sentinel(nm, range(120, 132), 34)
    ln_stats(list(range(120, 132)), (4, "s[60:61]"), 132, 133, 34)
    ln_apply(136, vX1, 132, 133, 36)
    modulate(140, 136, vCb, vSb, 144)
    a("v_cvt_pk_bf16_f32 v36, v140, v141"); a("v_cvt_pk_bf16_f32 v37, v142, v143")
    a("ds_write_b64 v%d, v[36:37] offset:%d" % (vActW, L_ACT))
    vB3 = 120
    for kb in range(5): a("ds_read_b128 %s, v%d offset:%d" % (V(vB3 + 4 * kb, 4), vActR, L_ACT + kb * 64))
    a("s_waitcnt lgkmcnt(0)")
    stamp(13)
    for kb in range(5):
        for m in range(2):
            for cgp in range(2): mfma(140 + (m * 2 + cgp) * 4, vF + m * 40 + (cgp * 5 + kb) * 4, vB3 + 4 * kb, kb == 0)
    xwrite(L_X5, 256, [140, 144, 148, 152])
    for jg in range(10):
        r = vF + jg * 4
        a("ds_read_b64_tr_b16 %s, v15 offset:%d" % (V(r, 2), L_TW + 20480 + jg * 1024))
        a("ds_read_b64_tr_b16 %s, v15 offset:%d" % (V(r + 2, 2), L_TW + 20480 + jg * 1024 + 128))
        if jg == 4: a("s_waitcnt lgkmcnt(0)")
    a("v_and_b32 v33, 31, v%d" % vLane); a("v_lshlrev_b32 v33, 2, v33")
    nm = a.newlabel("L_sx5")
    spin_begin(nm)
    for w in range(4):
        a("ds_read_b32 v%d, v33 offset:%d" % (120 + w, L_X5 + 256 * w)); a("ds_read_b32 v%d, v33 offset:%d" % (124 + w, L_X5 + 256 * w + 128))
    a("s_waitcnt lgkmcnt(0)")
    spin_until_no_sentinel(nm, range(120, 128), 34)
    for b in (120, 124):
        a("v_add_f32 v%d, v%d, v%d" % (b, b, b + 1)); a("v_add_f32 v%d, v%d, v%d" % (b + 2, b + 2, b + 3)); a("v_add_f32 v%d, v%d, v%d" % (b, b, b + 2))
        bf16_round("v%d" % b, "v%d" % b)
    a("v_mul_f32 v34, v120, v120"); a("v_mov_b32 v35, 1.0"); a("v_fmac_f32 v35, %s, v34" % f32(0.044715))
    a("v_mul_f32 v35, v35, v120"); a("v_mul_f32 v35, %s, v35" % f32(-2.0 * 0.7978845608028654 * LOG2E))
    a("v_exp_f32 v35, v35"); a("v_add_f32 v35, 1.0, v35"); a("v_rcp_f32 v35, v35"); a("v_mul_f32 v35, v120, v35")
    bf16_round("v35", "v35")
    a("v_mul_f32 v35, v35, v124"); a("v_cvt_pk_bf16_f32 v35, v35, v35")
    a("v_lshrrev_b32 v33, 1, v33"); a("s_lshl_b32 s7, s3, 6"); a("v_add_u32 v33, s7, v33")
    a("ds_write_b16 v33, v35 offset:%d" % L_ACT2)
    a("v_add_u32 v33, s7, v%d" % vG16)
    a("ds_read_b128 v[128:131], v33 offset:%d" % L_ACT2)
    a("s_waitcnt lgkmcnt(0)")
    for jg in range(10): mfma(80 + 4 * jg, vF + 4 * jg, 128, True)
    a("s_mul_i32 s7, s11, 2560"); a("s_mul_i32 s8, s3, 640"); a("s_add_u32 s7, s7, s8"); a("s_add_u32 s7, s7, %d" % WS_Y2)
    exec4(True)
    for jg in range(10): a("buffer_store_dwordx4 %s, v%d, %s, s7 offen offset:%d sc1" % (V(80 + 4 * jg, 4), vG16, S4(WS), 64 * jg))
    exec4(False)
    stamp(14)
    a("s_branch L_CEND")

    a.label("L_T4")
    stamp(11)
    a("v_lshlrev_b32 v33, 2, v15"); a("s_lshl_b32 s8, s11, 6")
    nm = a.newlabel("L_py1f")
    spin_begin(nm)
    for r in range(8):
        a("s_add_u32 s7, s8, %d" % (WS_Y1 + r * 2560))
        a("buffer_load_dword v%d, v33, %s, s7 offen sc1" % (120 + r, S4(WS)))
    a("s_waitcnt vmcnt(0)")
    spin_until_no_sentinel(nm, range(120, 128), 32)
    tree8(120, 1, 0)
    bf16_round("v120", "v120"); a("v_mul_f32 v120, v16, v120"); bf16_round("v120", "v120")
    a("v_add_f32 v21, v20, v120"); bf16_round("v21", "v21")
    stamp(12)
    a("v_lshrrev_b32 v32, 4, v%d" % vLane); a("s_mov_b32 s7, 2560"); a("v_mul_lo_u32 v34, v32, s7"); a("v_add_u32 v33, v33, v34")
    a("v_cmp_gt_u32 vcc, 2, v32"); oob_unless(22, 33, "vcc")
    nm = a.newlabel("L_py2")
    spin_begin(nm)
    for i in range(14):
        a("s_add_u32 s7, s8, %d" % (WS_Y2 + i * 4 * 2560))
        a("buffer_load_dword v%d, v%d, %s, s7 offen sc1" % (120 + i, 33 if i < 13 else 22, S4(WS)))
    a("s_waitcnt vmcnt(0)")
    spin_until_no_sentinel(nm, range(120, 134), 32)
    stamp(13)
    for x, y in ((0, 1), (2, 3), (4, 5), (6, 7), (8, 9), (10, 11), (12, 13), (0, 2), (4, 6), (8, 10), (0, 4), (8, 12), (0, 8)):
        a("v_add_f32 v%d, v%d, v%d" % (120 + x, 120 + x, 120 + y))
    a("v_mov_b32 v34, v120"); a("v_permlane16_swap_b32 v120, v34"); a("v_add_f32 v120, v120, v34")
    a("v_mov_b32 v34, v120"); a("v_permlane32_swap_b32 v120, v34"); a("v_add_f32 v120, v120, v34")
    bf16_round("v120", "v120"); a("v_mul_f32 v120, v18, v120"); bf16_round("v120", "v120")
    a("v_add_f32 v120, v21, v120"); a("v_cvt_pk_bf16_f32 v120, v120, v120")
    srd(XS, 38, 39, 1280)
    a("v_lshlrev_b32 v33, 1, v15"); a("v_cmp_gt_u32 vcc, 16, v%d" % vLane); oob_unless(33, 33, "vcc")
    a("s_lshl_b32 s7, s11, 5")
    a("buffer_store_short v120, v33, %s, s7 offen" % S4(XS))
    a("s_cmp_lg_u32 s11, 0"); a("s_cbranch_scc1 L_CEND")
    a("v_mov_b32 v34, s%d" % sNon); a("v_cmp_eq_u32 vcc, 0, v%d" % vLane); oob_unless(33, vZero, "vcc")
    a("buffer_store_dword v34, v33, %s, 0 offen sc1" % S4(WS))
    a.label("L_CEND")
    stamp(15)
    if cfg.stamps:
        a("s_add_u32 s3, s3, 8")
        stamps_flush("s3", S4(WS))
    a("s_endpgm")
    a.label("L_BAIL")
    a("v_mov_b32 v34, 1"); a("v_cmp_eq_u32 vcc, 0, v%d" % vLane); a("v_mov_b32 v33, 4"); oob_unless(33, 33, "vcc")
    a("buffer_atomic_add v34, v33, %s, 0 offen" % S4(DBG))
    a("s_endpgm")

HEADER = """; adaLN-conditioned block: cached multi-head attention (decode) + GEGLU MLP, one persistent launch.
; @launch grid=(256,1,1) block=(768,1,1) lds=%d
.amdgcn_target "amdgcn-amd-amdhsa--gfx950"
.text
.globl %s
.p2align 8
.type %s,@function
%s:
"""
FOOTER = """
.section .rodata,"a"
.p2align 6
.amdhsa_kernel %s
  .amdhsa_next_free_vgpr 168
  .amdhsa_next_free_sgpr 102
  .amdhsa_accum_offset 168
  .amdhsa_group_segment_fixed_size 0
  .amdhsa_kernarg_size 112
  .amdhsa_user_sgpr_count 2
  .amdhsa_user_sgpr_kernarg_segment_ptr 1
  .amdhsa_system_sgpr_workgroup_id_x 1
.end_amdhsa_kernel
"""
def build(**kw):
    cfg = Cfg(**kw)
    a = gen(cfg)
    return HEADER % (LDS_ALLOC, KNAME, KNAME, KNAME) + a.text() + FOOTER % KNAME

if __name__ == "__main__":
    out = sys.argv[1] if len(sys.argv) > 1 else "adaLN_cond__mha_block_cached__glu_gated_geglu__decode.s"
    kw = {}
    for x in sys.argv[2:]:
        k, v = x.split("=", 1)
        kw[k] = eval(v)
    open(out, "w").write(build(**kw))
    print("wrote", out, "LDS", LDS_ALLOC)
```

```python
import sys, struct
from asmlib import Asm

KNAME = "adaLN_cond__mha_block_cached__glu_gated_geglu__decode_kernel"
def f32(x): return "0x%08x" % struct.unpack("<I", struct.pack("<f", x))[0]
LOG2E = 1.4426950408889634
SCALE = 128 ** -0.5
SENT = 0xFFFFFFFF
OOB = 0x40000000

WS_W, WS_MOD, WS_Q, WS_REC, WS_Y1, WS_Y2, WS_STAMP = 0, 0x1000, 0x9000, 0x20000, 0x60000, 0x68000, 0x100000
WS_POOL = 0x12000
WS_SIZE = 0x200000
L_Q = 0
L_ACT = L_Q + 256
L_X = L_ACT + 2048
L_X1, L_X2, L_X3, L_X5, L_X4 = L_X, L_X + 256, L_X + 512, L_X + 1024, L_X + 2048
L_ACT2 = L_X + 5120
L_PART = L_ACT2 + 256
L_PML = L_PART + 4096
L_CTR = L_PML + 64
L_QF = L_CTR + 4
L_PF = L_QF + 4
L_EX = L_PF + 4
L_W0 = 12288
assert L_EX + 4 <= L_W0
WPW = 30720
L_WM, L_WQ = L_W0, L_W0 + 5120
L_TW = L_W0
LDS_BYTES = L_W0 + 122880
LDS_ALLOC = (LDS_BYTES + 1279) // 1280 * 1280

class Cfg:
    NP = 4
    R = 2
    THR = 4
    stamps = False
    spin_limit = 200000
    ldflags = "nt"
    wflags = ""
    cprio = 0
    b0wait = False
    dyn = True
    pd_mod = 3
    pd_q = 4
    psleep = 10
    pool = 0
    qmode = "barrier"
    tprio = None
    sprio = 0
    trig = 0
    def __init__(self, **kw):
        for k, v in kw.items():
            assert hasattr(self, k), k
            setattr(self, k, v)

def gen(cfg):
    a = Asm()
    NSTAMP = 16
    stamp_regs = {}
    def stamp(i):
        if cfg.stamps:
            a("s_memrealtime s[%d:%d]" % (64 + 2 * i, 65 + 2 * i))
    def stamps_flush(wave_slot_sgpr, srd):
        if not cfg.stamps: return
        a("s_waitcnt lgkmcnt(0)")
        a("v_mov_b32 v1, 0")
        for i in range(NSTAMP):
            a("s_mov_b32 m0, %d" % i)
            a("v_writelane_b32 v1, s%d, m0" % (64 + 2 * i))
        a("s_mul_i32 s96, s2, 12"); a("s_add_u32 s96, s96, %s" % wave_slot_sgpr); a("s_lshl_b32 s96, s96, 6"); a("s_add_u32 s96, s96, %d" % WS_STAMP)
        a("v_and_b32 v2, 63, v0"); a("v_lshlrev_b32 v2, 2, v2")
        a("v_cmp_gt_u32 vcc, 64, v2"); a("v_mov_b32 v3, %d" % OOB); a("v_cndmask_b32 v2, v3, v2, vcc")
        a("buffer_store_dword v1, v2, %s, s96 offen" % srd)
        a("s_waitcnt vmcnt(0)")
    def srd(dst, lo, hi, size):
        a("s_mov_b32 s%d, s%d" % (dst, lo)); a("s_and_b32 s%d, s%d, 0xffff" % (dst + 1, hi))
        a("s_mov_b32 s%d, 0x%x" % (dst + 2, size)); a("s_mov_b32 s%d, 0x20000" % (dst + 3))
    def S4(n): return "s[%d:%d]" % (n, n + 3)
    def V(n, k=1): return "v%d" % n if k == 1 else "v[%d:%d]" % (n, n + k - 1)
    DPPF = "row_mask:0xf bank_mask:0xf"
    def bf16_round(dst, src, tmp=None):
        a("v_cvt_pk_bf16_f32 %s, %s, %s" % (dst, src, src)); a("v_and_b32 %s, 0xffff0000, %s" % (dst, dst))
    def wave_allreduce_add(v, t):
        a("v_add_f32_dpp %s, %s, %s quad_perm:[1,0,3,2] %s" % (v, v, v, DPPF))
        a("v_add_f32_dpp %s, %s, %s quad_perm:[2,3,0,1] %s" % (v, v, v, DPPF))
        a("v_add_f32_dpp %s, %s, %s row_ror:4 %s" % (v, v, v, DPPF))
        a("v_add_f32_dpp %s, %s, %s row_ror:8 %s" % (v, v, v, DPPF))
        a("v_mov_b32 %s, %s" % (t, v)); a("v_permlane16_swap_b32 %s, %s" % (v, t)); a("v_add_f32 %s, %s, %s" % (v, v, t))
        a("v_mov_b32 %s, %s" % (t, v)); a("v_permlane32_swap_b32 %s, %s" % (v, t)); a("v_add_f32 %s, %s, %s" % (v, v, t))

    a("s_cmp_ge_u32 s2, 256"); a("s_cbranch_scc1 L_END")
    a("s_load_dwordx16 s[16:31], s[0:1], 0")
    a("s_load_dwordx8 s[32:39], s[0:1], 64")
    a("s_load_dwordx4 s[40:43], s[0:1], 96")
    stamp(0)
    a("v_lshrrev_b32 v1, 6, v0")
    a("v_readfirstlane_b32 s3, v1")
    a("v_and_b32 v1, 63, v0")
    a("s_cmp_ge_u32 s3, 8"); a("s_cbranch_scc1 L_CW")

    vLane, vOff, vQ, vM, vL, vAcc = 1, 2, 4, 8, 9, 10
    vS, vA, vB, vC, vT, vP, vAl, vMn = 18, 22, 23, 24, 25, 26, 27, 28
    vU = 18
    vBUF = 36
    def buf(r, kv, j): return vBUF + r * 32 + kv * 16 + j * 4
    a("v_lshlrev_b32 v%d, 4, v%d" % (vOff, vLane))
    a("s_lshr_b32 s4, s2, 3"); a("s_lshl_b32 s4, s4, 23")
    a("s_and_b32 s5, s2, 7"); a("s_lshl_b32 s5, s5, 20"); a("s_add_u32 s4, s4, s5")
    a("s_lshl_b32 s7, s3, 12"); a("s_mov_b32 s5, s4"); a("s_add_u32 s4, s4, s7")
    vIdx, vOne = 29, 30
    a("v_mov_b32 v3, 0"); a("v_mov_b32 v%d, 1" % vOne)
    a("s_mov_b32 s6, 0")
    a("s_waitcnt lgkmcnt(0)")
    srd(44, 18, 19, 0x10000000); srd(48, 20, 21, 0x10000000)
    NS = cfg.pool
    if NS:
        assert cfg.R == 2 and cfg.dyn
        nrem = 256 - NS; assert nrem & (nrem - 1) == 0
        PSZ = 8 * nrem
        srd(56, 42, 43, WS_SIZE)
        vAt, vAtO = 31, 32
        a("s_lshr_b32 s13, s2, 3"); a("s_lshl_b32 s55, s13, 23")
        a("s_lshl_b32 s13, s13, 8"); a("s_add_u32 s13, s13, %d" % WS_POOL)
        a("v_mov_b32 v%d, s13" % vAtO); a("v_cmp_eq_u32 vcc, 0, v%d" % vLane); a("v_mov_b32 v%d, 0x%x" % (vAt, OOB)); a("v_cndmask_b32 v%d, v%d, v%d, vcc" % (vAtO, vAt, vAtO))
        a("s_mov_b32 s54, 0")
    def issue_setup():
        a("s_cmp_lt_u32 s6, 32"); a("s_cselect_b32 s7, s4, 0x%x" % OOB)
        a("s_add_u32 s4, s4, 32768"); a("s_add_u32 s6, s6, 1")
    def grab():
        if NS:
            lab = a.newlabel("L_nograb")
            a("s_cmp_lg_u32 s54, 0"); a("s_cbranch_scc1 %s" % lab)
        a("s_mov_b64 exec, 1"); a("ds_add_rtn_u32 v%d, v3, v%d offset:%d" % (vIdx, vOne, L_CTR)); a("s_mov_b64 exec, -1")
        if NS: a.label(lab)
    def pool_setup(r):
        lst, lgo, lpf, lsw = a.newlabel("L_st"), a.newlabel("L_go"), a.newlabel("L_pf"), a.newlabel("L_nsw")
        a("s_cmp_eq_u32 s54, 0"); a("s_cbranch_scc1 %s" % lst)
        a("s_waitcnt vmcnt(8)")
        a("v_readfirstlane_b32 s12, v%d" % vAt)
        a("s_cmp_eq_u32 s54, 2"); a("s_cselect_b32 s12, %d, s12" % PSZ)
        a("s_lshr_b32 s7, s12, %d" % (nrem.bit_length() - 1)); a("s_lshl_b32 s7, s7, 20")
        a("s_and_b32 s13, s12, %d" % (nrem - 1)); a("s_add_u32 s13, s13, %d" % NS); a("s_lshl_b32 s13, s13, 12")
        a("s_add_u32 s7, s7, s13"); a("s_add_u32 s7, s7, s55")
        a("s_cmp_lt_u32 s12, %d" % PSZ); a("s_cselect_b32 s7, s7, 0x%x" % OOB); a("s_cselect_b32 s%d, 1, 0" % (52 + r)); a("s_cselect_b32 s13, 0, 0x%x" % OOB)
        a("s_cselect_b32 s54, 1, 2")
        if cfg.trig == "ex":
            a("s_cbranch_scc1 %s" % lgo)
            a("ds_write_b32 v3, v%d offset:%d" % (vOne, L_EX))
        a("s_branch %s" % lgo)
        a.label(lst)
        a("s_waitcnt vmcnt(8) lgkmcnt(0)")
        a("v_readfirstlane_b32 s12, v%d" % vIdx)
        a("s_lshl_b32 s7, s12, 12"); a("s_add_u32 s7, s7, s5"); a("s_mov_b32 s%d, 1" % (52 + r))
        a("s_mov_b32 s13, 0x%x" % OOB)
        a("s_cmp_lt_u32 s12, %d" % (NS - 8)); a("s_cbranch_scc1 %s" % lgo)
        a("s_mov_b32 s54, 1"); a("s_mov_b32 s13, 0")
        a("s_mov_b32 s60, 0")
        a.label(lpf)
        a("s_add_u32 s60, s60, 1"); a("s_cmp_gt_u32 s60, %d" % (cfg.spin_limit * 16)); a("s_cbranch_scc1 %s" % lgo)
        a("ds_read_b32 v%d, v3 offset:%d" % (vIdx, L_PF)); a("s_waitcnt lgkmcnt(0)")
        a("v_readfirstlane_b32 s61, v%d" % vIdx); a("s_cmp_eq_u32 s61, 0"); a("s_cbranch_scc1 %s" % lpf)
        a.label(lgo)
        a("v_mov_b32 v%d, 1" % vAt)
        a("buffer_atomic_add v%d, v%d, %s, s13 offen sc0" % (vAt, vAtO, S4(56)))
    def dyn_setup(r):
        a("s_waitcnt lgkmcnt(0)"); a("v_readfirstlane_b32 s12, v%d" % vIdx)
        a("s_lshl_b32 s7, s12, 12"); a("s_add_u32 s7, s7, s5")
        a("s_cmp_lt_u32 s12, 256"); a("s_cselect_b32 s7, s7, 0x%x" % OOB); a("s_cselect_b32 s%d, 1, 0" % (52 + r))
    def issue_grp(r, kv):
        for j in range(4):
            a("buffer_load_dwordx4 %s, v%d, %s, s7 offen offset:%d %s" % (V(buf(r, kv, j), 4), vOff, S4(44 + 4 * kv), j * 1024, cfg.ldflags))
    def issue(r):
        if NS: pool_setup(r)
        elif cfg.dyn: dyn_setup(r)
        else: issue_setup()
        issue_grp(r, 0); issue_grp(r, 1)
    if cfg.sprio: a("s_setprio %d" % cfg.sprio)
    a("s_barrier")
    stamp(1)
    first = True
    for r in range(cfg.NP):
        issue_setup()
        for kv in range(2):
            if not first and cfg.THR < 63: a("s_waitcnt vmcnt(%d)" % cfg.THR)
            first = False
            issue_grp(r, kv)
    stamp(2)
    a("v_mov_b32 v%d, 0xff800000" % vM); a("v_mov_b32 v%d, 0" % vL)
    for i in range(8): a("v_mov_b32 v%d, 0" % (vAcc + i))
    a("v_and_b32 v%d, 15, v%d" % (vT, vLane)); a("v_lshlrev_b32 v%d, 4, v%d" % (vT, vT))
    a("s_mov_b32 s8, %s" % f32(SCALE)); a("s_mov_b32 s9, %s" % f32(LOG2E)); a("s_mov_b32 s10, 0xffff0000")
    if cfg.qmode == "flag":
        a("s_mov_b32 s13, 0")
        a("L_QWAIT:")
        a("s_add_u32 s13, s13, 1"); a("s_cmp_gt_u32 s13, %d" % (cfg.spin_limit * 16)); a("s_cbranch_scc1 L_QOK")
        a("ds_read_b32 v%d, v3 offset:%d" % (vA, L_QF)); a("s_waitcnt lgkmcnt(0)")
        a("v_readfirstlane_b32 s12, v%d" % vA); a("s_cmp_lg_u32 s12, 0"); a("s_cbranch_scc1 L_QOK")
        a("s_sleep 2"); a("s_branch L_QWAIT")
    else:
        a("s_barrier")
    if cfg.sprio: a("s_setprio 0")
    a("L_QOK:")
    stamp(3)
    a("ds_read_b128 %s, v%d offset:%d" % (V(vQ, 4), vT, L_Q))
    a("s_waitcnt lgkmcnt(0)")
    def process(r, nk, nv, refill=False):
        if refill and cfg.dyn: grab()
        a("s_waitcnt vmcnt(%d)" % nk)
        for i in range(4):
            for j in range(4):
                a("v_dot2_f32_bf16 v%d, v%d, v%d, %s" % (vS + j, buf(r, 0, j) + i, vQ + i, "0" if i == 0 else "v%d" % (vS + j)))
        a("v_add_f32_dpp v%d, v%d, v%d row_ror:8 row_mask:0xf bank_mask:0x3" % (vA, vS + 0, vS + 0))
        a("v_add_f32_dpp v%d, v%d, v%d row_ror:8 row_mask:0xf bank_mask:0x3" % (vB, vS + 1, vS + 1))
        a("v_add_f32_dpp v%d, v%d, v%d row_ror:8 row_mask:0xf bank_mask:0xc" % (vA, vS + 2, vS + 2))
        a("v_add_f32_dpp v%d, v%d, v%d row_ror:8 row_mask:0xf bank_mask:0xc" % (vB, vS + 3, vS + 3))
        a("v_add_f32_dpp v%d, v%d, v%d row_half_mirror row_mask:0xf bank_mask:0x5" % (vC, vA, vA))
        a("v_add_f32_dpp v%d, v%d, v%d row_half_mirror row_mask:0xf bank_mask:0xa" % (vC, vB, vB))
        a("v_add_f32_dpp v%d, v%d, v%d quad_perm:[1,0,3,2] %s" % (vC, vC, vC, DPPF))
        a("v_add_f32_dpp v%d, v%d, v%d quad_perm:[2,3,0,1] %s" % (vC, vC, vC, DPPF))
        a("v_cvt_pk_bf16_f32 v%d, v%d, v%d" % (vC, vC, vC)); a("v_and_b32 v%d, s10, v%d" % (vC, vC))
        a("v_mul_f32 v%d, s8, v%d" % (vC, vC))
        a("v_cvt_pk_bf16_f32 v%d, v%d, v%d" % (vC, vC, vC)); a("v_and_b32 v%d, s10, v%d" % (vC, vC))
        a("v_max_f32_dpp v%d, v%d, v%d row_ror:4 %s" % (vA, vC, vC, DPPF))
        a("v_max_f32_dpp v%d, v%d, v%d row_ror:8 %s" % (vA, vA, vA, DPPF))
        a("v_max_f32 v%d, v%d, v%d" % (vMn, vM, vA))
        a("v_sub_f32 v%d, v%d, v%d" % (vAl, vM, vMn)); a("v_sub_f32 v%d, v%d, v%d" % (vP, vC, vMn))
        a("v_mul_f32 v%d, s9, v%d" % (vAl, vAl)); a("v_mul_f32 v%d, s9, v%d" % (vP, vP))
        a("v_exp_f32 v%d, v%d" % (vAl, vAl)); a("v_exp_f32 v%d, v%d" % (vP, vP))
        a("v_mov_b32 v%d, v%d" % (vM, vMn))
        a("v_fma_f32 v%d, v%d, v%d, v%d" % (vL, vL, vAl, vP))
        for i in range(8): a("v_mul_f32 v%d, v%d, v%d" % (vAcc + i, vAcc + i, vAl))
        a("s_waitcnt vmcnt(%d)" % nv)
        for j in range(4):
            for i in range(4):
                src = buf(r, 1, j) + i
                a("v_lshlrev_b32 v%d, 16, v%d" % (vU + 2 * i, src)); a("v_and_b32 v%d, s10, v%d" % (vU + 2 * i + 1, src))
            for k in range(8):
                a("v_fmac_f32_dpp v%d, v%d, v%d row_newbcast:%d %s" % (vAcc + k, vP, vU + k, 4 * j, DPPF))
    XA = 1 if NS else 0
    out = [8] * cfg.NP
    for t in range(cfg.NP):
        n_after = sum(out[1:])
        process(t, n_after + 4, n_after, refill=(t < cfg.R))
        out.pop(0)
        if t < cfg.R:
            issue(t); out.append(8 + XA)
    assert len(out) == cfg.R
    nloop = (32 - cfg.NP) // cfg.R
    assert nloop * cfg.R == 32 - cfg.NP
    a("s_mov_b32 s11, 0")
    a("L_SLOOP:")
    for r in range(cfg.R):
        if cfg.dyn: a("s_cmp_eq_u32 s%d, 0" % (52 + r)); a("s_cbranch_scc1 L_SDONE")
        process(r, (8 + XA) * (cfg.R - 1) + 4, (8 + XA) * (cfg.R - 1), refill=True)
        issue(r)
    if cfg.dyn: a("s_branch L_SLOOP")
    else: a("s_add_u32 s11, s11, 1"); a("s_cmp_lt_u32 s11, %d" % nloop); a("s_cbranch_scc1 L_SLOOP")
    a("L_SDONE:")
    stamp(4)
    a("v_mov_b32 v%d, v%d" % (vA, vM)); a("v_mov_b32 v%d, v%d" % (vB, vM))
    a("v_permlane16_swap_b32 v%d, v%d" % (vA, vB)); a("v_max_f32 v%d, v%d, v%d" % (vA, vA, vB))
    a("v_mov_b32 v%d, v%d" % (vB, vA))
    a("v_permlane32_swap_b32 v%d, v%d" % (vA, vB)); a("v_max_f32 v%d, v%d, v%d" % (vMn, vA, vB))
    a("v_sub_f32 v%d, v%d, v%d" % (vAl, vM, vMn)); a("v_mul_f32 v%d, s9, v%d" % (vAl, vAl)); a("v_exp_f32 v%d, v%d" % (vAl, vAl))
    a("v_mul_f32 v%d, v%d, v%d" % (vL, vL, vAl))
    for i in range(8): a("v_mul_f32 v%d, v%d, v%d" % (vAcc + i, vAcc + i, vAl))
    a("v_add_f32_dpp v%d, v%d, v%d row_ror:4 %s" % (vL, vL, vL, DPPF))
    a("v_add_f32_dpp v%d, v%d, v%d row_ror:8 %s" % (vL, vL, vL, DPPF))
    a("v_mov_b32 v%d, v%d" % (vB, vL)); a("v_permlane16_swap_b32 v%d, v%d" % (vL, vB)); a("v_add_f32 v%d, v%d, v%d" % (vL, vL, vB))
    a("v_mov_b32 v%d, v%d" % (vB, vL)); a("v_permlane32_swap_b32 v%d, v%d" % (vL, vB)); a("v_add_f32 v%d, v%d, v%d" % (vL, vL, vB))
    for p in range(4):
        a("v_permlane32_swap_b32 v%d, v%d" % (vAcc + 2 * p, vAcc + 2 * p + 1))
    for p in range(4):
        a("v_add_f32 v%d, v%d, v%d" % (vAcc + 2 * p, vAcc + 2 * p, vAcc + 2 * p + 1))
    a("v_permlane16_swap_b32 v%d, v%d" % (vAcc + 0, vAcc + 2)); a("v_permlane16_swap_b32 v%d, v%d" % (vAcc + 4, vAcc + 6))
    a("v_add_f32 v%d, v%d, v%d" % (vAcc + 0, vAcc + 0, vAcc + 2)); a("v_add_f32 v%d, v%d, v%d" % (vAcc + 4, vAcc + 4, vAcc + 6))
    a("v_lshrrev_b32 v%d, 4, v%d" % (vA, vLane))
    a("v_and_b32 v%d, 1, v%d" % (vB, vA)); a("v_lshlrev_b32 v%d, 1, v%d" % (vB, vB))
    a("v_lshrrev_b32 v%d, 1, v%d" % (vA, vA)); a("v_or_b32 v%d, v%d, v%d" % (vA, vA, vB))
    a("v_and_b32 v%d, 15, v%d" % (vB, vLane)); a("v_lshl_add_u32 v%d, v%d, 3, v%d" % (vA, vB, vA))
    a("v_lshlrev_b32 v%d, 2, v%d" % (vA, vA))
    a("s_lshl_b32 s12, s3, 9"); a("v_add_u32 v%d, s12, v%d" % (vA, vA))
    a("ds_write_b32 v%d, v%d offset:%d" % (vA, vAcc + 0, L_PART))
    a("ds_write_b32 v%d, v%d offset:%d" % (vA, vAcc + 4, L_PART + 16))
    a("v_mov_b32 v%d, v%d" % (vS, vMn)); a("v_mov_b32 v%d, v%d" % (vS + 1, vL))
    a("s_lshl_b32 s12, s3, 3"); a("v_mov_b32 v%d, s12" % vB)
    a("ds_write_b64 v%d, %s offset:%d" % (vB, V(vS, 2), L_PML))
    a("s_waitcnt lgkmcnt(0)")
    stamp(5)
    stamps_flush_S = True
    if cfg.stamps:
        srd(44, 42, 43, WS_SIZE)
        stamps_flush("s3", S4(44))
    a("s_endpgm")

    a("L_CW:")
    gen_control(a, cfg, stamp, stamps_flush, srd, S4, V, DPPF, bf16_round, wave_allreduce_add)
    a("L_END:")
    a("s_endpgm")
    return a


def gen_control(a, cfg, stamp, stamps_flush, srd, S4, V, DPPF, bf16_round, wave_allreduce_add):
    sSig, sHead, sNon = 4, 5, 6
    WS, DBG, W1, W2, XS = 44, 48, 52, 56, 60
    vLane, vZero, vG16, vTR32, vTR64, vOwnB, vOwn, vX, vActW, vActR, vGa = 1, 2, 3, 4, 5, 6, 7, 8, 12, 13, 14
    wf = cfg.wflags
    OOBS = "0x%x" % OOB
    def oob_unless(dst, src, cond):
        a("v_mov_b32 v35, %s" % OOBS); a("v_cndmask_b32 v%d, v35, v%d, %s" % (dst, src, cond))
    a("s_sub_u32 s3, s3, 8")
    if cfg.cprio: a("s_setprio %d" % cfg.cprio)
    a("s_and_b32 s7, s2, 7"); a("s_lshr_b32 s5, s2, 3")
    a("s_lshr_b32 s8, s5, 2"); a("s_lshl_b32 s8, s8, 3"); a("s_add_u32 s8, s8, s7"); a("s_lshl_b32 s8, s8, 2")
    a("s_and_b32 s9, s5, 3"); a("s_add_u32 s%d, s8, s9" % sSig)
    a("v_mov_b32 v%d, 0" % vZero)
    a("v_lshrrev_b32 v%d, 4, v%d" % (vG16, vLane))
    a("v_and_b32 v32, 15, v%d" % vLane); a("v_lshrrev_b32 v33, 2, v32"); a("v_and_b32 v34, 3, v32")
    a("v_lshl_add_u32 v33, v%d, 3, v33" % vG16)
    a("v_lshlrev_b32 v34, 3, v34")
    a("v_lshl_add_u32 v%d, v33, 5, v34" % vTR32); a("v_lshl_add_u32 v%d, v33, 6, v34" % vTR64)
    a("v_lshlrev_b32 v%d, 4, v%d" % (vG16, vG16))
    a("s_mul_i32 s7, s3, 160"); a("v_lshl_add_u32 v%d, v%d, 2, s7" % (vOwn, vLane))
    a("v_cmp_gt_u32 vcc, 40, v%d" % vLane); a("s_mov_b64 s[14:15], vcc")
    a("v_lshlrev_b32 v33, 1, v%d" % vOwn); oob_unless(vOwnB, 33, "s[14:15]")
    a("s_lshl_b32 s7, s3, 9"); a("v_lshl_add_u32 v%d, v%d, 3, s7" % (vActW, vLane)); a("v_add_u32 v%d, s7, v%d" % (vActR, vG16))
    a("v_lshrrev_b32 v33, 4, v%d" % vOwn); a("v_lshlrev_b32 v33, 7, v33"); a("v_and_b32 v34, 15, v%d" % vOwn); a("v_lshl_add_u32 v33, v34, 2, v33")
    oob_unless(vGa, 33, "s[14:15]")
    a("s_mov_b32 s13, 0xffff0000")
    a("s_waitcnt lgkmcnt(0)")
    srd(WS, 42, 43, WS_SIZE); srd(DBG, 40, 41, 256); srd(W1, 36, 37, 640 * 7680); srd(W2, 22, 23, 640 * 8192)
    vW, vCc, vXa, vXo = 16, 18, 20, 26
    a("buffer_load_dword v%d, v%d, %s, 0 offen sc1" % (vW, vZero, S4(WS)))
    srd(XS, 34, 35, 1280)
    a("buffer_load_dwordx2 %s, v%d, %s, 0 offen" % (V(vCc, 2), vOwnB, S4(XS)))
    a("v_lshrrev_b32 v32, 1, v%d" % vLane); a("v_and_b32 v33, 1, v%d" % vLane); a("v_lshlrev_b32 v33, 4, v33")
    a("s_mov_b32 s7, 7680"); a("v_mul_lo_u32 v28, v32, s7"); a("v_add_u32 v28, v28, v33")
    a("v_lshl_add_u32 v29, v32, 13, v33")
    a("s_mul_i32 s7, s3, %d" % (160 * 7680)); a("s_lshl_b32 s8, s%d, 5" % sSig); a("s_add_u32 s7, s7, s8")
    a("s_cmp_lt_u32 s%d, 240" % sSig); a("s_cselect_b32 s7, s7, %s" % OOBS)
    a("s_mul_i32 s9, s3, %d" % WPW)
    for kb in range(5):
        a("s_add_u32 m0, s9, %d" % (L_WM + kb * 1024))
        a("buffer_load_dwordx4 v28, %s, s7 offen %s lds" % (S4(W1), wf))
        if kb < 4: a("s_add_u32 s7, s7, %d" % (32 * 7680))
    srd(XS, 16, 17, 1280)
    a("v_lshlrev_b32 v30, 2, v%d" % vLane)
    for i in range(5): a("buffer_load_dword v%d, v30, %s, 0 offen offset:%d" % (vXa + i, S4(XS), 256 * i))
    a("buffer_load_dwordx2 %s, v%d, %s, 0 offen" % (V(vXo, 2), vOwnB, S4(XS)))
    a("s_mul_i32 s7, s3, %d" % (160 * 8192)); a("s_add_u32 s7, s7, s8")
    for kb in range(5):
        a("s_add_u32 m0, s9, %d" % (L_WQ + kb * 1024))
        a("buffer_load_dwordx4 v29, %s, s7 offen %s lds" % (S4(W2), wf))
        if kb < 4: a("s_add_u32 s7, s7, %d" % (32 * 8192))
    a("s_and_b32 s7, s2, 7"); a("s_lshr_b32 s8, s2, 6")
    a("s_add_u32 s9, s7, s%d" % sHead); a("s_and_b32 s9, s9, 7")
    a("s_mov_b32 s10, 3"); a("s_mov_b32 s11, 0"); a("s_mov_b32 s12, 0")
    lab_m, lab_f, lab_d = a.newlabel("L_rm"), a.newlabel("L_rf"), a.newlabel("L_rd")
    a("s_cmp_ge_u32 s9, 5"); a("s_cbranch_scc1 %s" % lab_m)
    a("s_mov_b32 s11, s7"); a("s_mul_i32 s12, s8, 5"); a("s_add_u32 s12, s12, s9")
    a("s_mov_b32 s10, 0"); a("s_branch %s" % lab_d)
    a.label(lab_m)
    a("s_lshl_b32 s7, s7, 2"); a("s_add_u32 s7, s7, s8")
    a("s_cmp_eq_u32 s9, 7"); a("s_cbranch_scc1 %s" % lab_f)
    a("s_cmp_ge_u32 s7, 27"); a("s_cbranch_scc1 %s" % lab_d)
    a("s_lshl_b32 s7, s7, 1"); a("s_sub_u32 s9, s9, 5"); a("s_add_u32 s11, s7, s9")
    a("s_mov_b32 s10, 1"); a("s_branch %s" % lab_d)
    a.label(lab_f)
    a("s_cmp_ge_u32 s7, 20"); a("s_cbranch_scc1 %s" % lab_d)
    a("s_mov_b32 s11, s7"); a("s_mov_b32 s10, 2")
    a.label(lab_d)
    for i in range(4): a("v_mov_b32 v%d, -1" % (36 + i))
    a("v_lshlrev_b32 v30, 4, v%d" % vLane)
    a("s_lshl_b32 s7, s2, 10"); a("s_add_u32 s7, s7, %d" % WS_REC)
    a("s_mul_i32 s9, s11, 2560"); a("s_lshl_b32 s8, s12, 7"); a("s_add_u32 s9, s9, s8"); a("s_add_u32 s9, s9, %d" % WS_Y1)
    a("s_cmp_eq_u32 s3, 1"); a("s_cselect_b32 s7, s9, s7")
    a("s_cmp_eq_u32 s10, 0"); a("s_cselect_b32 s9, 8, 0")
    a("s_cmp_eq_u32 s3, 1"); a("s_cselect_b32 s8, s9, 33")
    a("s_cmp_ge_u32 s3, 2"); a("s_cselect_b32 s8, 0, s8")
    a("v_cmp_gt_u32 vcc, s8, v%d" % vLane); oob_unless(31, 30, "vcc")
    a("buffer_store_dwordx4 v[36:39], v31, %s, s7 offen sc1" % S4(WS))
    a("s_mul_i32 s7, s11, 2560"); a("s_mul_i32 s8, s3, 640"); a("s_add_u32 s7, s7, s8"); a("s_add_u32 s7, s7, %d" % WS_Y2)
    a("s_cmp_eq_u32 s10, 1"); a("s_cselect_b32 s8, 40, 0")
    a("v_cmp_gt_u32 vcc, s8, v%d" % vLane); oob_unless(31, 30, "vcc")
    a("buffer_store_dwordx4 v[36:39], v31, %s, s7 offen sc1" % S4(WS))
    a("s_and_b32 s7, s2, 7"); a("s_cmp_eq_u32 s7, 0"); a("s_cselect_b32 s8, 1, 0"); a("s_cmp_eq_u32 s3, 2"); a("s_cselect_b32 s8, s8, 0")
    a("s_lshl_b32 s7, s%d, 8" % sHead); a("s_add_u32 s7, s7, %d" % WS_POOL)
    a("v_cmp_gt_u32 vcc, s8, v%d" % vLane); oob_unless(31, vZero, "vcc")
    a("buffer_store_dword v%d, v31, %s, s7 offen sc1" % (vZero, S4(WS)))
    a("s_lshl_b32 s7, s3, 10"); a("v_add_u32 v31, s7, v30")
    a("ds_write_b128 v31, v[36:39] offset:%d" % L_X)
    a("v_and_b32 v31, 15, v%d" % vLane); a("v_lshlrev_b32 v31, 4, v31"); a("s_lshl_b32 s7, s3, 8"); a("v_add_u32 v31, s7, v31")
    a("ds_write_b128 v31, v[36:39] offset:%d" % (L_X + 4096))
    a("v_mov_b32 v31, %d" % (cfg.NP * 8)); a("ds_write_b32 v%d, v31 offset:%d" % (vZero, L_CTR))
    a("ds_write_b32 v%d, v%d offset:%d" % (vZero, vZero, L_QF)); a("ds_write_b32 v%d, v%d offset:%d" % (vZero, vZero, L_PF)); a("ds_write_b32 v%d, v%d offset:%d" % (vZero, vZero, L_EX))
    a("s_waitcnt lgkmcnt(0)")
    if cfg.b0wait: a("s_waitcnt vmcnt(3)")
    stamp(1)
    a("s_barrier")
    NV = 21
    a("s_waitcnt vmcnt(%d)" % (NV - 2))
    a("v_readfirstlane_b32 s%d, v%d" % (sNon, vW))
    a("s_mul_i32 s%d, s%d, 0x9E3779B1" % (sNon, sNon)); a("s_add_u32 s%d, s%d, 0x7F4A7C15" % (sNon, sNon))
    def unpack2(dst, src):
        a("v_lshlrev_b32 v%d, 16, v%d" % (dst, src)); a("v_and_b32 v%d, s13, v%d" % (dst + 1, src))
    unpack2(28, vCc); unpack2(30, vCc + 1)
    for i in range(4): a("v_mul_f32 v%d, %s, v%d" % (32 + i, f32(-LOG2E), 28 + i))
    for i in range(4): a("v_exp_f32 v%d, v%d" % (32 + i, 32 + i))
    for i in range(4): a("v_add_f32 v%d, 1.0, v%d" % (32 + i, 32 + i))
    for i in range(4): a("v_rcp_f32 v%d, v%d" % (32 + i, 32 + i))
    for i in range(4): a("v_mul_f32 v%d, v%d, v%d" % (28 + i, 28 + i, 32 + i))
    a("v_cvt_pk_bf16_f32 v28, v28, v29"); a("v_cvt_pk_bf16_f32 v29, v30, v31")
    a("ds_write_b64 v%d, v[28:29] offset:%d" % (vActW, L_ACT))
    vB = 40
    for kb in range(5): a("ds_read_b128 %s, v%d offset:%d" % (V(vB + 4 * kb, 4), vActR, L_ACT + kb * 64))
    stamp(2)
    vWf = 72
    a("s_mul_i32 s7, s3, %d" % WPW); a("v_add_u32 v32, s7, v%d" % vTR32)
    a("s_waitcnt vmcnt(%d)" % (NV - 7))
    for kb in range(5):
        a("ds_read_b64_tr_b16 %s, v32 offset:%d" % (V(vWf + 4 * kb, 2), L_WM + kb * 1024))
        a("ds_read_b64_tr_b16 %s, v32 offset:%d" % (V(vWf + 4 * kb + 2, 2), L_WM + kb * 1024 + 128))
    vAcc = 36
    a("s_waitcnt lgkmcnt(0)")
    def mfma(acc, A, B, first):
        a("v_mfma_f32_16x16x32_bf16 %s, %s, %s, %s" % (V(acc, 4), V(A, 4), V(B, 4), "0" if first else V(acc, 4)))
    for kb in range(5): mfma(vAcc, vWf + 4 * kb, vB + 4 * kb, kb == 0)
    def exec4(on):
        if on: a("s_mov_b32 exec_lo, 0x00010001"); a("s_mov_b32 exec_hi, 0x00010001")
        else: a("s_mov_b64 exec, -1")
    def xwrite(base, per_wave, regs):
        a("s_mul_i32 s7, s3, %d" % per_wave); a("v_add_u32 v33, s7, v%d" % vG16)
        exec4(True)
        for k, r in enumerate(regs): a("ds_write_b128 v33, %s offset:%d" % (V(r, 4), base + 64 * k))
        exec4(False)
    def spin_begin(name):
        a("s_mov_b32 s9, 0"); a.label(name)
        a("s_add_u32 s9, s9, 1"); a("s_cmp_gt_u32 s9, %d" % cfg.spin_limit); a("s_cbranch_scc1 L_BAIL")
    def umax(regs, dst):
        regs = list(regs)
        a("v_max_u32 v%d, v%d, v%d" % (dst, regs[0], regs[1])); regs = regs[2:]
        while len(regs) >= 2:
            a("v_max3_u32 v%d, v%d, v%d, v%d" % (dst, dst, regs[0], regs[1])); regs = regs[2:]
        if regs: a("v_max_u32 v%d, v%d, v%d" % (dst, dst, regs[0]))
    def spin_until_no_sentinel(name, regs, t):
        umax(regs, t); a("v_cmp_eq_u32 vcc, -1, v%d" % t); a("s_cbranch_vccnz %s" % name)
    def xsum(name, base, stride, nl, dst):
        a("v_and_b32 v33, %d, v%d" % (nl - 1, vLane)); a("v_lshlrev_b32 v33, 4, v33")
        spin_begin(name)
        for w in range(4): a("ds_read_b128 %s, v33 offset:%d" % (V(dst + 4 * w, 4), base + stride * w))
        a("s_waitcnt lgkmcnt(0)")
        spin_until_no_sentinel(name, range(dst, dst + 16), 34)
        for i in range(4):
            a("v_add_f32 v%d, v%d, v%d" % (dst + i, dst + i, dst + 4 + i)); a("v_add_f32 v%d, v%d, v%d" % (dst + 8 + i, dst + 8 + i, dst + 12 + i))
        for i in range(4): a("v_add_f32 v%d, v%d, v%d" % (dst + i, dst + i, dst + 8 + i))
    def publish_granules(src, slot_base, nlanes_code):
        a("v_cvt_pk_bf16_f32 v%d, v%d, v%d" % (src, src, src + 1)); a("v_cvt_pk_bf16_f32 v%d, v%d, v%d" % (src + 2, src + 2, src + 3))
        a("v_mov_b32 v%d, s%d" % (src + 1, sNon)); a("v_mov_b32 v%d, s%d" % (src + 3, sNon))
        a("s_lshl_b32 s7, s%d, 7" % sSig); a("s_add_u32 s7, s7, %d" % slot_base)
        nlanes_code()
        a("v_lshlrev_b32 v33, 4, v%d" % vLane); a("v_cmp_gt_u32 vcc, s8, v%d" % vLane); oob_unless(33, 33, "vcc")
        a("buffer_store_dwordx4 %s, v33, %s, s7 offen sc1" % (V(src, 4), S4(WS)))
    xwrite(L_X1, 64, [vAcc])
    lab = a.newlabel("L_nm")
    a("s_cmp_lg_u32 s3, 0"); a("s_cbranch_scc1 %s" % lab)
    xsum(a.newlabel("L_sx1"), L_X1, 64, 4, 92)
    def okm(): a("s_cmp_lt_u32 s%d, 240" % sSig); a("s_cselect_b32 s8, 4, 0")
    publish_granules(92, WS_MOD, okm)
    a.label(lab)
    stamp(3)
    a("s_waitcnt vmcnt(8)")
    unpack2(vX, vXo); unpack2(vX + 2, vXo + 1)
    vE = 60
    for i in range(5): unpack2(vE + 2 * i, vXa + i)
    def ln_stats(vals, nmask_last, vmean, vden, t):
        first = True
        for k, x in enumerate(vals):
            src = x
            if nmask_last and k >= len(vals) - nmask_last[0]:
                a("v_cndmask_b32 v%d, 0, v%d, %s" % (t, x, nmask_last[1])); src = t
            if first: a("v_mov_b32 v%d, v%d" % (vmean, src)); first = False
            else: a("v_add_f32 v%d, v%d, v%d" % (vmean, vmean, src))
        wave_allreduce_add("v%d" % vmean, "v%d" % t)
        a("v_mul_f32 v%d, %s, v%d" % (vmean, f32(1.0 / 640), vmean))
        first = True
        for k, x in enumerate(vals):
            a("v_sub_f32 v%d, v%d, v%d" % (t, x, vmean))
            if nmask_last and k >= len(vals) - nmask_last[0]:
                a("v_cndmask_b32 v%d, 0, v%d, %s" % (t, t, nmask_last[1]))
            if first: a("v_mul_f32 v%d, v%d, v%d" % (vden, t, t)); first = False
            else: a("v_fma_f32 v%d, v%d, v%d, v%d" % (vden, t, t, vden))
        wave_allreduce_add("v%d" % vden, "v%d" % t)
        a("v_mul_f32 v%d, %s, v%d" % (vden, f32(1.0 / 640), vden))
        bf16_round("v%d" % vden, "v%d" % vden)
        a("v_add_f32 v%d, %s, v%d" % (vden, f32(1e-5), vden)); bf16_round("v%d" % vden, "v%d" % vden)
        a("v_sqrt_f32 v%d, v%d" % (vden, vden)); bf16_round("v%d" % vden, "v%d" % vden)
        bf16_round("v%d" % vmean, "v%d" % vmean)
    def ln_apply(dst, src, vmean, vden, t):
        a("v_rcp_f32 v%d, v%d" % (t, vden))
        for i in range(4):
            a("v_sub_f32 v%d, v%d, v%d" % (dst + i, src + i, vmean)); bf16_round("v%d" % (dst + i), "v%d" % (dst + i))
            a("v_mul_f32 v%d, v%d, v%d" % (t + 1, dst + i, t))
            a("v_fma_f32 v%d, -v%d, v%d, v%d" % (t + 2, t + 1, vden, dst + i))
            a("v_fma_f32 v%d, v%d, v%d, v%d" % (dst + i, t + 2, t, t + 1))
            bf16_round("v%d" % (dst + i), "v%d" % (dst + i))
    vLN = 24
    ln_stats([vE + i for i in range(10)], None, 28, 29, 32)
    ln_apply(vLN, vX, 28, 29, 32)
    a("s_mul_i32 s7, s3, %d" % WPW); a("v_add_u32 v32, s7, v%d" % vTR32)
    a("s_waitcnt vmcnt(3)")
    for kb in range(5):
        a("ds_read_b64_tr_b16 %s, v32 offset:%d" % (V(vWf + 4 * kb, 2), L_WQ + kb * 1024))
        a("ds_read_b64_tr_b16 %s, v32 offset:%d" % (V(vWf + 4 * kb + 2, 2), L_WQ + kb * 1024 + 128))
    stamp(4)
    def pipelined_poll(name, D, nloads, issue_fn, check_fn, take_fn):
        done = a.newlabel(name + "_done")
        oks = [a.newlabel(name + "_ok") for _ in range(D)]
        for k in range(D - 1):
            issue_fn(k)
            if cfg.psleep: a("s_sleep %d" % cfg.psleep)
        spin_begin(name)
        for k in range(D):
            issue_fn((k + D - 1) % D)
            a("s_waitcnt vmcnt(%d)" % (nloads * (D - 1)))
            check_fn(k)
            a("s_cbranch_vccz %s" % oks[k])
        a("s_branch %s" % name)
        for k in range(D):
            a.label(oks[k]); take_fn(k)
            if k < D - 1: a("s_branch %s" % done)
        a.label(done)
    def poll_mod(name, specs, vaddr, mask, D=1, scratch=None):
        n = len(specs)
        def reg(k, i): return specs[i][0] if D == 1 else scratch + (k * n + i) * 4
        def issue_fn(k):
            for i, (dst, col) in enumerate(specs):
                a("s_mov_b32 s7, %d" % (WS_MOD + (col >> 4) * 128))
                a("buffer_load_dwordx4 %s, v%d, %s, s7 offen sc1" % (V(reg(k, i), 4), vaddr, S4(WS)))
        def check_fn(k):
            first = True
            for i in range(n):
                for t in (1, 3):
                    if first: a("v_xor_b32 v34, s%d, v%d" % (sNon, reg(k, i) + t)); first = False
                    else: a("v_xor_b32 v35, s%d, v%d" % (sNon, reg(k, i) + t)); a("v_or_b32 v34, v34, v35")
            a("v_cmp_ne_u32 vcc, 0, v34"); a("s_and_b64 vcc, vcc, %s" % mask)
        def take_fn(k):
            if D == 1: return
            for i, (dst, col) in enumerate(specs):
                for t in (0, 2): a("v_mov_b32 v%d, v%d" % (dst + t, reg(k, i) + t))
        pipelined_poll(name, D, n, issue_fn, check_fn, take_fn)
    vSa, vCa = 92, 96
    poll_mod(a.newlabel("L_pm"), [(vSa, 0), (vCa, 640)], vGa, "s[14:15]", D=cfg.pd_mod, scratch=112)
    stamp(5)
    def modulate(dst, ln, vca, vsa, t):
        unpack2(t, vca); unpack2(t + 2, vca + 2); unpack2(t + 4, vsa); unpack2(t + 6, vsa + 2)
        for i in range(4):
            a("v_add_f32 v%d, 1.0, v%d" % (t + i, t + i)); bf16_round("v%d" % (t + i), "v%d" % (t + i))
            a("v_mul_f32 v%d, v%d, v%d" % (dst + i, ln + i, t + i)); bf16_round("v%d" % (dst + i), "v%d" % (dst + i))
            a("v_add_f32 v%d, v%d, v%d" % (dst + i, dst + i, t + 4 + i))
    modulate(108, vLN, vCa, vSa, 100)
    a("v_cvt_pk_bf16_f32 v28, v108, v109"); a("v_cvt_pk_bf16_f32 v29, v110, v111")
    a("ds_write_b64 v%d, v[28:29] offset:%d" % (vActW, L_ACT))
    for kb in range(5): a("ds_read_b128 %s, v%d offset:%d" % (V(vB + 4 * kb, 4), vActR, L_ACT + kb * 64))
    a("s_waitcnt lgkmcnt(0)")
    for kb in range(5): mfma(vAcc, vWf + 4 * kb, vB + 4 * kb, kb == 0)
    xwrite(L_X2, 64, [vAcc])
    lab = a.newlabel("L_nq")
    a("s_cmp_lg_u32 s3, 0"); a("s_cbranch_scc1 %s" % lab)
    xsum(a.newlabel("L_sx2"), L_X2, 64, 4, 92)
    def okq(): a("s_mov_b32 s8, 4")
    publish_granules(92, WS_Q, okq)
    a("v_mov_b32 v34, 1"); a("v_cmp_eq_u32 vcc, 0, v%d" % vLane); oob_unless(33, vZero, "vcc")
    a("buffer_atomic_add v34, v33, %s, 0 offen" % S4(DBG))
    stamp(6)
    a("v_lshrrev_b32 v33, 3, v%d" % vLane); a("v_lshlrev_b32 v33, 7, v33"); a("v_and_b32 v34, 7, v%d" % vLane); a("v_lshl_add_u32 v33, v34, 3, v33")
    a("s_lshl_b32 s8, s%d, 10" % sHead); a("s_add_u32 s8, s8, %d" % WS_Q)
    a("v_mov_b32 v31, v33")
    pipelined_poll(a.newlabel("L_pq"), cfg.pd_q, 1,
                   lambda k: a("buffer_load_dwordx2 %s, v31, %s, s8 offen sc1" % (V(144 + 2 * k, 2), S4(WS))),
                   lambda k: a("v_cmp_ne_u32 vcc, s%d, v%d" % (sNon, 145 + 2 * k)),
                   lambda k: a("v_mov_b32 v92, v%d" % (144 + 2 * k)))
    a("v_lshlrev_b32 v33, 2, v%d" % vLane)
    a("ds_write_b32 v33, v92 offset:%d" % L_Q)
    a("s_waitcnt lgkmcnt(0)")
    a("v_mov_b32 v33, 1"); a("ds_write_b32 v%d, v33 offset:%d" % (vZero, L_QF))
    a.label(lab)
    stamp(7)
    if cfg.qmode == "barrier": a("s_barrier")

    lab = a.newlabel("L_stay")
    a("s_cmp_eq_u32 s3, 0"); a("s_cbranch_scc1 %s" % lab)
    a("s_cmp_eq_u32 s10, 3"); a("s_cbranch_scc1 L_CEND")
    a("s_cmp_lg_u32 s10, 2"); a("s_cbranch_scc1 %s" % lab)
    a("s_cmp_ge_u32 s3, 2"); a("s_cbranch_scc1 L_CEND")
    a.label(lab)
    nm = a.newlabel("L_pc")
    spin_begin(nm)
    a("buffer_load_dword v33, v%d, %s, 0 offen sc1" % (vZero, S4(DBG)))
    a("s_waitcnt vmcnt(0)")
    a("v_cmp_gt_u32 vcc, 256, v33"); a("s_cbranch_vccnz %s" % nm)
    a("v_mov_b32 v33, 1"); a("ds_write_b32 v%d, v33 offset:%d" % (vZero, L_PF))
    a("s_cmp_eq_u32 s10, 0"); a("s_cbranch_scc1 L_PRE_WO")
    a("s_cmp_eq_u32 s10, 1"); a("s_cbranch_scc1 L_PRE_MLP")
    a("s_cmp_eq_u32 s10, 2"); a("s_cbranch_scc1 L_PRE_FIN")
    a("s_branch L_T1")
    vF = 40
    def wait_trig():
        if not cfg.trig or cfg.trig == "b2": return
        nm = a.newlabel("L_trig")
        a("s_mov_b32 s9, 0")
        a.label(nm)
        a("s_add_u32 s9, s9, 1"); a("s_cmp_gt_u32 s9, %d" % (cfg.spin_limit * 16)); a("s_cbranch_scc1 L_BAIL")
        a("s_sleep 4")
        a("ds_read_b32 v33, v%d offset:%d" % (vZero, L_EX if cfg.trig == "ex" else L_CTR)); a("s_waitcnt lgkmcnt(0)")
        a("v_readfirstlane_b32 s7, v33"); a("s_cmp_lt_u32 s7, %d" % (1 if cfg.trig == "ex" else cfg.trig)); a("s_cbranch_scc1 %s" % nm)
        if cfg.tprio is not None: a("s_setprio %d" % cfg.tprio)
    a.label("L_PRE_WO")
    wait_trig()
    srd(W1, 24, 25, 4096 * 1280)
    a("v_lshrrev_b32 v33, 2, v%d" % vLane); a("s_mov_b32 s7, 1280"); a("v_mul_lo_u32 v33, v33, s7"); a("v_and_b32 v34, 3, v%d" % vLane); a("v_lshl_add_u32 v33, v34, 4, v33")
    a("s_lshl_b32 s7, s11, 2"); a("s_add_u32 s7, s7, s3"); a("s_mul_i32 s7, s7, %d" % (128 * 1280)); a("s_lshl_b32 s8, s12, 6"); a("s_add_u32 s7, s7, s8")
    a("s_mul_i32 s9, s3, %d" % WPW)
    for i in range(8):
        a("s_add_u32 m0, s9, %d" % (L_TW + i * 1024))
        a("buffer_load_dwordx4 v33, %s, s7 offen %s lds" % (S4(W1), wf))
        if i < 7: a("s_add_u32 s7, s7, %d" % (16 * 1280))
    a("v_add_u32 v32, s9, v%d" % vTR64)
    a("s_waitcnt vmcnt(0)")
    for cgp in range(2):
        for kb in range(4):
            r = vF + (cgp * 4 + kb) * 4
            a("ds_read_b64_tr_b16 %s, v32 offset:%d" % (V(r, 2), L_TW + kb * 2048 + cgp * 32))
            a("ds_read_b64_tr_b16 %s, v32 offset:%d" % (V(r + 2, 2), L_TW + kb * 2048 + cgp * 32 + 256))
        a("s_waitcnt lgkmcnt(0)")
    a("s_branch L_T1")
    a.label("L_PRE_MLP")
    vGaG, vSb, vCb = 16, 20, 24
    poll_mod(a.newlabel("L_pm2"), [(vGaG, 1280), (vSb, 1920), (vCb, 2560)], vGa, "s[14:15]")
    wait_trig()
    srd(W1, 28, 29, 640 * 3456); srd(W2, 30, 31, 640 * 3456)
    a("v_lshrrev_b32 v33, 2, v%d" % vLane); a("s_mov_b32 s7, 3456"); a("v_mul_lo_u32 v33, v33, s7"); a("v_and_b32 v34, 3, v%d" % vLane); a("v_lshl_add_u32 v33, v34, 4, v33")
    a("s_mul_i32 s7, s3, %d" % (160 * 3456)); a("s_lshl_b32 s8, s11, 6"); a("s_add_u32 s7, s7, s8")
    a("s_mul_i32 s9, s3, %d" % WPW)
    for i in range(10):
        a("s_add_u32 m0, s9, %d" % (L_TW + i * 1024))
        a("buffer_load_dwordx4 v33, %s, s7 offen %s lds" % (S4(W1), wf))
        a("s_add_u32 m0, s9, %d" % (L_TW + 10240 + i * 1024))
        a("buffer_load_dwordx4 v33, %s, s7 offen %s lds" % (S4(W2), wf))
        if i < 9: a("s_add_u32 s7, s7, %d" % (16 * 3456))
    srd(W1, 32, 33, 1728 * 1280)
    a("v_lshrrev_b32 v33, 1, v%d" % vLane); a("s_mov_b32 s7, 1280"); a("v_mul_lo_u32 v33, v33, s7"); a("v_and_b32 v34, 1, v%d" % vLane); a("v_lshl_add_u32 v33, v34, 4, v33")
    a("s_mul_i32 s7, s11, %d" % (32 * 1280)); a("s_mul_i32 s8, s3, 320"); a("s_add_u32 s7, s7, s8")
    for i in range(10):
        a("s_add_u32 m0, s9, %d" % (L_TW + 20480 + i * 1024))
        a("buffer_load_dwordx4 v33, %s, s7 offen %s lds" % (S4(W1), wf))
        if i < 9: a("s_add_u32 s7, s7, 32")
    a("v_add_u32 v32, s9, v%d" % vTR64); a("v_add_u32 v15, s9, v%d" % vTR32)
    a("s_waitcnt vmcnt(0)")
    for m in range(2):
        for cgp in range(2):
            for kb in range(5):
                r = vF + m * 40 + (cgp * 5 + kb) * 4
                a("ds_read_b64_tr_b16 %s, v32 offset:%d" % (V(r, 2), L_TW + m * 10240 + kb * 2048 + cgp * 32))
                a("ds_read_b64_tr_b16 %s, v32 offset:%d" % (V(r + 2, 2), L_TW + m * 10240 + kb * 2048 + cgp * 32 + 256))
            a("s_waitcnt lgkmcnt(0)")
    a("s_branch L_T1")
    a.label("L_PRE_FIN")
    a("s_lshl_b32 s11, s11, 1"); a("s_add_u32 s11, s11, s3")
    a("v_and_b32 v15, 15, v%d" % vLane); a("v_lshrrev_b32 v33, 1, v15"); a("v_lshlrev_b32 v33, 3, v33"); a("s_lshl_b32 s7, s11, 7"); a("v_add_u32 v33, s7, v33")
    nm = a.newlabel("L_pm3")
    spin_begin(nm)
    a("s_mov_b32 s7, %d" % (WS_MOD + (1280 >> 4) * 128)); a("buffer_load_dwordx2 v[16:17], v33, %s, s7 offen sc1" % S4(WS))
    a("s_mov_b32 s7, %d" % (WS_MOD + (3200 >> 4) * 128)); a("buffer_load_dwordx2 v[18:19], v33, %s, s7 offen sc1" % S4(WS))
    a("s_waitcnt vmcnt(0)")
    a("v_xor_b32 v34, s%d, v17" % sNon); a("v_xor_b32 v35, s%d, v19" % sNon); a("v_or_b32 v34, v34, v35")
    a("v_cmp_ne_u32 vcc, 0, v34"); a("s_cbranch_vccnz %s" % nm)
    a("v_and_b32 v34, 1, v15"); a("v_cmp_eq_u32 vcc, 1, v34")
    for r in (16, 18):
        a("v_lshlrev_b32 v34, 16, v%d" % r); a("v_and_b32 v%d, s13, v%d" % (r, r)); a("v_cndmask_b32 v%d, v34, v%d, vcc" % (r, r))
    srd(XS, 16, 17, 1280)
    a("s_lshl_b32 s7, s11, 5"); a("v_lshlrev_b32 v34, 1, v15")
    a("buffer_load_ushort v20, v34, %s, s7 offen" % S4(XS)); a("s_waitcnt vmcnt(0)"); a("v_lshlrev_b32 v20, 16, v20")

    a.label("L_T1")
    if cfg.tprio is not None: a("s_setprio %d" % cfg.cprio)
    stamp(8)
    a("s_barrier")
    stamp(9)
    lab = a.newlabel("L_noT1")
    a("s_cmp_lg_u32 s3, 0"); a("s_cbranch_scc1 %s" % lab)
    oi = [120, 124, 128, 132]
    a("v_and_b32 v33, 7, v%d" % vLane); a("v_lshlrev_b32 v33, 3, v33")
    a("ds_read_b64 v[34:35], v33 offset:%d" % L_PML)
    a("v_and_b32 v33, 31, v%d" % vLane); a("v_lshlrev_b32 v33, 4, v33"); a("v_lshrrev_b32 v32, 5, v%d" % vLane); a("v_lshl_add_u32 v33, v32, 11, v33")
    for i in range(4): a("ds_read_b128 %s, v33 offset:%d" % (V(oi[i], 4), L_PART + i * 512))
    a("s_mov_b32 s8, %s" % f32(LOG2E))
    a("s_waitcnt lgkmcnt(4)")
    def combine8(vMl, oi, tA, tB, tC, normalize):
        a("v_max_f32_dpp v%d, v%d, v%d quad_perm:[1,0,3,2] %s" % (tA, vMl, vMl, DPPF))
        a("v_max_f32_dpp v%d, v%d, v%d quad_perm:[2,3,0,1] %s" % (tA, tA, tA, DPPF))
        a("v_max_f32_dpp v%d, v%d, v%d row_half_mirror %s" % (tA, tA, tA, DPPF))
        a("v_sub_f32 v%d, v%d, v%d" % (tC, vMl, tA)); a("v_mul_f32 v%d, s8, v%d" % (tC, tC)); a("v_exp_f32 v%d, v%d" % (tC, tC))
        a("v_mul_f32 v%d, v%d, v%d" % (tB, tC, vMl + 1))
        a("v_add_f32_dpp v%d, v%d, v%d quad_perm:[1,0,3,2] %s" % (tB, tB, tB, DPPF))
        a("v_add_f32_dpp v%d, v%d, v%d quad_perm:[2,3,0,1] %s" % (tB, tB, tB, DPPF))
        a("v_add_f32_dpp v%d, v%d, v%d row_half_mirror %s" % (tB, tB, tB, DPPF))
        if normalize:
            a("v_rcp_f32 v%d, v%d" % (vMl, tB))
            a("v_mul_f32 v%d, v%d, v%d" % (vMl + 1, tC, vMl))
            a("v_fma_f32 v%d, -v%d, v%d, v%d" % (tA, vMl + 1, tB, tC))
            a("v_fma_f32 v%d, v%d, v%d, v%d" % (tC, tA, vMl, vMl + 1))
        else:
            a("s_waitcnt lgkmcnt(0)")
        for i in range(4):
            a("v_mov_b32_dpp v%d, v%d row_newbcast:%d row_mask:0x3 bank_mask:0xf" % (vMl, tC, i))
            a("v_mov_b32_dpp v%d, v%d row_newbcast:%d row_mask:0xc bank_mask:0xf" % (vMl, tC, i + 4))
            for k in range(4):
                if i == 0: a("v_mul_f32 v%d, v%d, v%d" % (oi[0] + k, oi[0] + k, vMl))
                else: a("v_fma_f32 v%d, v%d, v%d, v%d" % (oi[0] + k, oi[i] + k, vMl, oi[0] + k))
    combine8(34, oi, 36, 37, 38, False)
    for k in range(4): a("v_mov_b32 v%d, v%d" % (oi[1] + k, oi[0] + k))
    for k in range(4): a("v_permlane32_swap_b32 v%d, v%d" % (oi[0] + k, oi[1] + k))
    for k in range(4): a("v_add_f32 v%d, v%d, v%d" % (oi[0] + k, oi[0] + k, oi[1] + k))
    a("v_cmp_gt_u32 vcc, 32, v%d" % vLane)
    a("v_cndmask_b32 v%d, v36, v%d, vcc" % (oi[0], oi[0])); a("v_cndmask_b32 v%d, v37, v%d, vcc" % (oi[0] + 1, oi[0] + 1))
    a("v_lshlrev_b32 v33, 4, v%d" % vLane); a("v_cmp_gt_u32 vcc, 33, v%d" % vLane); oob_unless(33, 33, "vcc")
    a("s_lshl_b32 s7, s2, 10"); a("s_add_u32 s7, s7, %d" % WS_REC)
    a("buffer_store_dwordx4 %s, v33, %s, s7 offen sc1" % (V(oi[0], 4), S4(WS)))
    a.label(lab)
    stamp(10)
    a("s_cmp_eq_u32 s10, 0"); a("s_cbranch_scc1 L_T2")
    a("s_cmp_eq_u32 s10, 3"); a("s_cbranch_scc1 L_CEND")
    def poll_ml(head_sgpr, name, sleep):
        a("v_and_b32 v33, 7, v%d" % vLane); a("v_lshlrev_b32 v33, 10, v33")
        a("s_lshl_b32 s8, %s, 13" % head_sgpr); a("s_add_u32 s8, s8, %d" % (WS_REC + 512))
        spin_begin(name)
        if sleep: a("s_sleep %d" % sleep)
        a("buffer_load_dwordx2 v[34:35], v33, %s, s8 offen sc1" % S4(WS))
        a("s_waitcnt vmcnt(0)")
        a("v_max_u32 v32, v34, v35"); a("v_cmp_eq_u32 vcc, -1, v32"); a("s_cbranch_vccnz %s" % name)
    poll_ml("s%d" % sHead, a.newlabel("L_gate"), 2)
    a("s_cmp_eq_u32 s10, 1"); a("s_cbranch_scc1 L_T3")
    a("s_branch L_T4")

    a.label("L_T2")
    a("s_lshl_b32 s4, s11, 2"); a("s_add_u32 s4, s4, s3")
    poll_ml("s4", a.newlabel("L_pml"), 1)
    stamp(11)
    oi = [120, 124, 128, 132]
    a("v_and_b32 v33, 31, v%d" % vLane); a("v_lshlrev_b32 v33, 4, v33"); a("v_lshrrev_b32 v32, 5, v%d" % vLane); a("v_lshl_add_u32 v33, v32, 12, v33")
    a("s_lshl_b32 s8, s4, 13"); a("s_add_u32 s8, s8, %d" % WS_REC)
    nm = a.newlabel("L_po")
    spin_begin(nm)
    for i in range(4): a("buffer_load_dwordx4 %s, v33, %s, s8 offen offset:%d sc1" % (V(oi[i], 4), S4(WS), i * 1024))
    a("s_waitcnt vmcnt(0)")
    spin_until_no_sentinel(nm, range(120, 136), 32)
    a("s_mov_b32 s8, %s" % f32(LOG2E))
    combine8(34, oi, 36, 37, 38, True)
    a("v_permlane32_swap_b32 v%d, v%d" % (oi[0] + 0, oi[0] + 2)); a("v_permlane32_swap_b32 v%d, v%d" % (oi[0] + 1, oi[0] + 3))
    a("v_add_f32 v36, v%d, v%d" % (oi[0] + 0, oi[0] + 2)); a("v_add_f32 v37, v%d, v%d" % (oi[0] + 1, oi[0] + 3))
    a("v_cvt_pk_bf16_f32 v36, v36, v37")
    a("v_and_b32 v33, 31, v%d" % vLane); a("v_lshlrev_b32 v33, 3, v33"); a("v_lshrrev_b32 v37, 5, v%d" % vLane); a("v_lshl_add_u32 v33, v37, 2, v33")
    a("s_lshl_b32 s7, s3, 9"); a("v_add_u32 v33, s7, v33")
    a("ds_write_b32 v33, v36 offset:%d" % L_ACT)
    vB2 = 136
    for kb in range(4): a("ds_read_b128 %s, v%d offset:%d" % (V(vB2 + 4 * kb, 4), vActR, L_ACT + kb * 64))
    a("s_waitcnt lgkmcnt(0)")
    for kb in range(4):
        for cgp in range(2): mfma(152 + 4 * cgp, vF + (cgp * 4 + kb) * 4, vB2 + 4 * kb, kb == 0)
    xwrite(L_X3, 128, [152, 156])
    a("s_cmp_lg_u32 s3, 0"); a("s_cbranch_scc1 L_CEND")
    xsum(a.newlabel("L_sx3"), L_X3, 128, 8, 120)
    a("s_mul_i32 s7, s11, 2560"); a("s_lshl_b32 s8, s12, 7"); a("s_add_u32 s7, s7, s8"); a("s_add_u32 s7, s7, %d" % WS_Y1)
    a("v_lshlrev_b32 v33, 4, v%d" % vLane); a("v_cmp_gt_u32 vcc, 8, v%d" % vLane); oob_unless(33, 33, "vcc")
    a("buffer_store_dwordx4 v[120:123], v33, %s, s7 offen sc1" % S4(WS))
    stamp(12)
    a("s_branch L_CEND")

    def tree8(base, stride, k):
        r = [base + i * stride + k for i in range(8)]
        for x, y in ((0, 1), (2, 3), (4, 5), (6, 7), (0, 2), (4, 6), (0, 4)):
            a("v_add_f32 v%d, v%d, v%d" % (r[x], r[x], r[y]))
    a.label("L_T3")
    stamp(11)
    a("v_lshlrev_b32 v33, 2, v%d" % vOwn); oob_unless(33, 33, "s[14:15]")
    nm = a.newlabel("L_py1")
    spin_begin(nm)
    for r in range(8):
        a("s_mov_b32 s7, %d" % (WS_Y1 + r * 2560))
        a("buffer_load_dwordx4 %s, v33, %s, s7 offen sc1" % (V(120 + 4 * r, 4), S4(WS)))
    a("s_waitcnt vmcnt(0)")
    spin_until_no_sentinel(nm, range(120, 152), 32)
    stamp(12)
    unpack2(152, vGaG); unpack2(154, vGaG + 2)
    vX1 = 28
    for k in range(4):
        tree8(120, 4, k)
        bf16_round("v%d" % (120 + k), "v%d" % (120 + k))
        a("v_mul_f32 v%d, v%d, v%d" % (120 + k, 152 + k, 120 + k)); bf16_round("v%d" % (120 + k), "v%d" % (120 + k))
        a("v_add_f32 v%d, v%d, v%d" % (vX1 + k, vX + k, 120 + k)); bf16_round("v%d" % (vX1 + k), "v%d" % (vX1 + k))
    a("v_lshlrev_b32 v33, 2, v%d" % vOwn)
    a("s_mov_b64 exec, s[14:15]")
    a("ds_write_b128 v33, %s offset:%d" % (V(vX1, 4), L_X4))
    a("s_mov_b64 exec, -1")
    a("v_lshlrev_b32 v33, 4, v%d" % vLane); a("v_and_b32 v32, 31, v%d" % vLane); a("v_lshlrev_b32 v32, 4, v32")
    a("v_cmp_gt_u32 vcc, 32, v%d" % vLane); a("s_mov_b64 s[60:61], vcc")
    nm = a.newlabel("L_sx4")
    spin_begin(nm)
    a("ds_read_b128 v[120:123], v33 offset:%d" % L_X4); a("ds_read_b128 v[124:127], v33 offset:%d" % (L_X4 + 1024))
    a("ds_read_b128 v[128:131], v32 offset:%d" % (L_X4 + 2048))
    a("s_waitcnt lgkmcnt(0)")
    spin_until_no_sentinel(nm, range(120, 132), 34)
    ln_stats(list(range(120, 132)), (4, "s[60:61]"), 132, 133, 34)
    ln_apply(136, vX1, 132, 133, 36)
    modulate(140, 136, vCb, vSb, 144)
    a("v_cvt_pk_bf16_f32 v36, v140, v141"); a("v_cvt_pk_bf16_f32 v37, v142, v143")
    a("ds_write_b64 v%d, v[36:37] offset:%d" % (vActW, L_ACT))
    vB3 = 120
    for kb in range(5): a("ds_read_b128 %s, v%d offset:%d" % (V(vB3 + 4 * kb, 4), vActR, L_ACT + kb * 64))
    a("s_waitcnt lgkmcnt(0)")
    stamp(13)
    for kb in range(5):
        for m in range(2):
            for cgp in range(2): mfma(140 + (m * 2 + cgp) * 4, vF + m * 40 + (cgp * 5 + kb) * 4, vB3 + 4 * kb, kb == 0)
    xwrite(L_X5, 256, [140, 144, 148, 152])
    for jg in range(10):
        r = vF + jg * 4
        a("ds_read_b64_tr_b16 %s, v15 offset:%d" % (V(r, 2), L_TW + 20480 + jg * 1024))
        a("ds_read_b64_tr_b16 %s, v15 offset:%d" % (V(r + 2, 2), L_TW + 20480 + jg * 1024 + 128))
        if jg == 4: a("s_waitcnt lgkmcnt(0)")
    a("v_and_b32 v33, 31, v%d" % vLane); a("v_lshlrev_b32 v33, 2, v33")
    nm = a.newlabel("L_sx5")
    spin_begin(nm)
    for w in range(4):
        a("ds_read_b32 v%d, v33 offset:%d" % (120 + w, L_X5 + 256 * w)); a("ds_read_b32 v%d, v33 offset:%d" % (124 + w, L_X5 + 256 * w + 128))
    a("s_waitcnt lgkmcnt(0)")
    spin_until_no_sentinel(nm, range(120, 128), 34)
    for b in (120, 124):
        a("v_add_f32 v%d, v%d, v%d" % (b, b, b + 1)); a("v_add_f32 v%d, v%d, v%d" % (b + 2, b + 2, b + 3)); a("v_add_f32 v%d, v%d, v%d" % (b, b, b + 2))
        bf16_round("v%d" % b, "v%d" % b)
    a("v_mul_f32 v34, v120, v120"); a("v_mov_b32 v35, 1.0"); a("v_fmac_f32 v35, %s, v34" % f32(0.044715))
    a("v_mul_f32 v35, v35, v120"); a("v_mul_f32 v35, %s, v35" % f32(-2.0 * 0.7978845608028654 * LOG2E))
    a("v_exp_f32 v35, v35"); a("v_add_f32 v35, 1.0, v35"); a("v_rcp_f32 v35, v35"); a("v_mul_f32 v35, v120, v35")
    bf16_round("v35", "v35")
    a("v_mul_f32 v35, v35, v124"); a("v_cvt_pk_bf16_f32 v35, v35, v35")
    a("v_lshrrev_b32 v33, 1, v33"); a("s_lshl_b32 s7, s3, 6"); a("v_add_u32 v33, s7, v33")
    a("ds_write_b16 v33, v35 offset:%d" % L_ACT2)
    a("v_add_u32 v33, s7, v%d" % vG16)
    a("ds_read_b128 v[128:131], v33 offset:%d" % L_ACT2)
    a("s_waitcnt lgkmcnt(0)")
    for jg in range(10): mfma(80 + 4 * jg, vF + 4 * jg, 128, True)
    a("s_mul_i32 s7, s11, 2560"); a("s_mul_i32 s8, s3, 640"); a("s_add_u32 s7, s7, s8"); a("s_add_u32 s7, s7, %d" % WS_Y2)
    exec4(True)
    for jg in range(10): a("buffer_store_dwordx4 %s, v%d, %s, s7 offen offset:%d sc1" % (V(80 + 4 * jg, 4), vG16, S4(WS), 64 * jg))
    exec4(False)
    stamp(14)
    a("s_branch L_CEND")

    a.label("L_T4")
    stamp(11)
    a("v_lshlrev_b32 v33, 2, v15"); a("s_lshl_b32 s8, s11, 6")
    nm = a.newlabel("L_py1f")
    spin_begin(nm)
    for r in range(8):
        a("s_add_u32 s7, s8, %d" % (WS_Y1 + r * 2560))
        a("buffer_load_dword v%d, v33, %s, s7 offen sc1" % (120 + r, S4(WS)))
    a("s_waitcnt vmcnt(0)")
    spin_until_no_sentinel(nm, range(120, 128), 32)
    tree8(120, 1, 0)
    bf16_round("v120", "v120"); a("v_mul_f32 v120, v16, v120"); bf16_round("v120", "v120")
    a("v_add_f32 v21, v20, v120"); bf16_round("v21", "v21")
    stamp(12)
    a("v_lshrrev_b32 v32, 4, v%d" % vLane); a("s_mov_b32 s7, 2560"); a("v_mul_lo_u32 v34, v32, s7"); a("v_add_u32 v33, v33, v34")
    a("v_cmp_gt_u32 vcc, 2, v32"); oob_unless(22, 33, "vcc")
    nm = a.newlabel("L_py2")
    spin_begin(nm)
    for i in range(14):
        a("s_add_u32 s7, s8, %d" % (WS_Y2 + i * 4 * 2560))
        a("buffer_load_dword v%d, v%d, %s, s7 offen sc1" % (120 + i, 33 if i < 13 else 22, S4(WS)))
    a("s_waitcnt vmcnt(0)")
    spin_until_no_sentinel(nm, range(120, 134), 32)
    stamp(13)
    for x, y in ((0, 1), (2, 3), (4, 5), (6, 7), (8, 9), (10, 11), (12, 13), (0, 2), (4, 6), (8, 10), (0, 4), (8, 12), (0, 8)):
        a("v_add_f32 v%d, v%d, v%d" % (120 + x, 120 + x, 120 + y))
    a("v_mov_b32 v34, v120"); a("v_permlane16_swap_b32 v120, v34"); a("v_add_f32 v120, v120, v34")
    a("v_mov_b32 v34, v120"); a("v_permlane32_swap_b32 v120, v34"); a("v_add_f32 v120, v120, v34")
    bf16_round("v120", "v120"); a("v_mul_f32 v120, v18, v120"); bf16_round("v120", "v120")
    a("v_add_f32 v120, v21, v120"); a("v_cvt_pk_bf16_f32 v120, v120, v120")
    srd(XS, 38, 39, 1280)
    a("v_lshlrev_b32 v33, 1, v15"); a("v_cmp_gt_u32 vcc, 16, v%d" % vLane); oob_unless(33, 33, "vcc")
    a("s_lshl_b32 s7, s11, 5")
    a("buffer_store_short v120, v33, %s, s7 offen" % S4(XS))
    a("s_cmp_lg_u32 s11, 0"); a("s_cbranch_scc1 L_CEND")
    a("v_mov_b32 v34, s%d" % sNon); a("v_cmp_eq_u32 vcc, 0, v%d" % vLane); oob_unless(33, vZero, "vcc")
    a("buffer_store_dword v34, v33, %s, 0 offen sc1" % S4(WS))
    a.label("L_CEND")
    stamp(15)
    if cfg.stamps:
        a("s_add_u32 s3, s3, 8")
        stamps_flush("s3", S4(WS))
    a("s_endpgm")
    a.label("L_BAIL")
    a("s_mov_b64 exec, -1")
    a("v_mov_b32 v34, 1"); a("ds_write_b32 v%d, v34 offset:%d" % (vZero, L_QF)); a("ds_write_b32 v%d, v34 offset:%d" % (vZero, L_PF))
    a("v_mov_b32 v34, 1"); a("v_cmp_eq_u32 vcc, 0, v%d" % vLane); a("v_mov_b32 v33, 4"); oob_unless(33, 33, "vcc")
    a("buffer_atomic_add v34, v33, %s, 0 offen" % S4(DBG))
    a("s_endpgm")

HEADER = """; adaLN-conditioned block: cached multi-head attention (decode) + GEGLU MLP, one persistent launch.
; @launch grid=(256,1,1) block=(768,1,1) lds=%d
.amdgcn_target "amdgcn-amd-amdhsa--gfx950"
.text
.globl %s
.p2align 8
.type %s,@function
%s:
"""
FOOTER = """
.section .rodata,"a"
.p2align 6
.amdhsa_kernel %s
  .amdhsa_next_free_vgpr 168
  .amdhsa_next_free_sgpr 102
  .amdhsa_accum_offset 168
  .amdhsa_group_segment_fixed_size 0
  .amdhsa_kernarg_size 112
  .amdhsa_user_sgpr_count 2
  .amdhsa_user_sgpr_kernarg_segment_ptr 1
  .amdhsa_system_sgpr_workgroup_id_x 1
.end_amdhsa_kernel
"""
def build(**kw):
    cfg = Cfg(**kw)
    a = gen(cfg)
    return HEADER % (LDS_ALLOC, KNAME, KNAME, KNAME) + a.text() + FOOTER % KNAME

if __name__ == "__main__":
    out = sys.argv[1] if len(sys.argv) > 1 else "adaLN_cond__mha_block_cached__glu_gated_geglu__decode.s"
    kw = {}
    for x in sys.argv[2:]:
        k, v = x.split("=", 1)
        kw[k] = eval(v)
    open(out, "w").write(build(**kw))
    print("wrote", out, "LDS", LDS_ALLOC)
```

```python
import sys, struct
from asmlib import Asm

KNAME = "adaLN_cond__mha_block_cached__glu_gated_geglu__decode_kernel"
def f32(x): return "0x%08x" % struct.unpack("<I", struct.pack("<f", x))[0]
LOG2E = 1.4426950408889634
SCALE = 128 ** -0.5
SENT = 0xFFFFFFFF
OOB = 0x40000000

WS_W, WS_MOD, WS_Q, WS_REC, WS_Y1, WS_Y2, WS_STAMP = 0, 0x1000, 0x9000, 0x20000, 0x60000, 0x68000, 0x100000
WS_POOL = 0x180000
WS_TL = 0x140000
WS_SIZE = 0x200000
L_Q = 0
L_ACT = L_Q + 256
L_X = L_ACT + 2048
L_X1, L_X2, L_X3, L_X5, L_X4 = L_X, L_X + 256, L_X + 512, L_X + 1024, L_X + 2048
L_ACT2 = L_X + 5120
L_PART = L_ACT2 + 256
L_PML = L_PART + 4096
L_CTR = L_PML + 64
L_QF = L_CTR + 4
L_PF = L_QF + 4
L_EX = L_PF + 4
L_TAB = 12288
L_W0 = L_TAB + 8192
assert L_EX + 4 <= L_TAB
WPW = 30720
L_WM, L_WQ = L_W0, L_W0 + 5120
L_TW = L_W0
LDS_BYTES = L_W0 + 122880
LDS_ALLOC = (LDS_BYTES + 1279) // 1280 * 1280

class Cfg:
    NP = 4
    R = 2
    THR = 4
    stamps = False
    spin_limit = 200000
    ldflags = "nt"
    wflags = ""
    cprio = 0
    b0wait = False
    dyn = True
    pd_mod = 3
    pd_q = 4
    psleep = 10
    pmap = "region"
    nact = 8
    fakeat = 0
    timeline = False
    pmode = "M"
    look = 14
    gmin = 4
    gshift = 4
    wmode = "early"
    wmode_wo = None
    wmode_mlp = None
    pshard = 4
    pstride = 256
    pgrab = 2
    pool = 0
    qmode = "barrier"
    tprio = None
    sprio = 0
    trig = 0
    def __init__(self, **kw):
        for k, v in kw.items():
            assert hasattr(self, k), k
            setattr(self, k, v)

def gen(cfg):
    a = Asm()
    NSTAMP = 16
    stamp_regs = {}
    def stamp(i):
        if cfg.stamps:
            a("s_memrealtime s[%d:%d]" % (64 + 2 * i, 65 + 2 * i))
    def stamps_flush(wave_slot_sgpr, srd):
        if not cfg.stamps: return
        a("s_waitcnt lgkmcnt(0)")
        a("v_mov_b32 v1, 0")
        for i in range(NSTAMP):
            a("s_mov_b32 m0, %d" % i)
            a("v_writelane_b32 v1, s%d, m0" % (64 + 2 * i))
        a("s_mul_i32 s96, s2, 12"); a("s_add_u32 s96, s96, %s" % wave_slot_sgpr); a("s_lshl_b32 s96, s96, 6"); a("s_add_u32 s96, s96, %d" % WS_STAMP)
        a("v_and_b32 v2, 63, v0"); a("v_lshlrev_b32 v2, 2, v2")
        a("v_cmp_gt_u32 vcc, 64, v2"); a("v_mov_b32 v3, %d" % OOB); a("v_cndmask_b32 v2, v3, v2, vcc")
        a("buffer_store_dword v1, v2, %s, s96 offen" % srd)
        a("s_waitcnt vmcnt(0)")
    def srd(dst, lo, hi, size):
        a("s_mov_b32 s%d, s%d" % (dst, lo)); a("s_and_b32 s%d, s%d, 0xffff" % (dst + 1, hi))
        a("s_mov_b32 s%d, 0x%x" % (dst + 2, size)); a("s_mov_b32 s%d, 0x20000" % (dst + 3))
    def S4(n): return "s[%d:%d]" % (n, n + 3)
    def V(n, k=1): return "v%d" % n if k == 1 else "v[%d:%d]" % (n, n + k - 1)
    DPPF = "row_mask:0xf bank_mask:0xf"
    def bf16_round(dst, src, tmp=None):
        a("v_cvt_pk_bf16_f32 %s, %s, %s" % (dst, src, src)); a("v_and_b32 %s, 0xffff0000, %s" % (dst, dst))
    def wave_allreduce_add(v, t):
        a("v_add_f32_dpp %s, %s, %s quad_perm:[1,0,3,2] %s" % (v, v, v, DPPF))
        a("v_add_f32_dpp %s, %s, %s quad_perm:[2,3,0,1] %s" % (v, v, v, DPPF))
        a("v_add_f32_dpp %s, %s, %s row_ror:4 %s" % (v, v, v, DPPF))
        a("v_add_f32_dpp %s, %s, %s row_ror:8 %s" % (v, v, v, DPPF))
        a("v_mov_b32 %s, %s" % (t, v)); a("v_permlane16_swap_b32 %s, %s" % (v, t)); a("v_add_f32 %s, %s, %s" % (v, v, t))
        a("v_mov_b32 %s, %s" % (t, v)); a("v_permlane32_swap_b32 %s, %s" % (v, t)); a("v_add_f32 %s, %s, %s" % (v, v, t))

    a("s_cmp_ge_u32 s2, 256"); a("s_cbranch_scc1 L_END")
    a("s_load_dwordx16 s[16:31], s[0:1], 0")
    a("s_load_dwordx8 s[32:39], s[0:1], 64")
    a("s_load_dwordx4 s[40:43], s[0:1], 96")
    stamp(0)
    a("v_lshrrev_b32 v1, 6, v0")
    a("v_readfirstlane_b32 s3, v1")
    a("v_and_b32 v1, 63, v0")
    a("s_cmp_ge_u32 s3, 8"); a("s_cbranch_scc1 L_CW")

    vLane, vOff, vQ, vM, vL, vAcc = 1, 2, 4, 8, 9, 10
    vS, vA, vB, vC, vT, vP, vAl, vMn = 18, 22, 23, 24, 25, 26, 27, 28
    vU = 18
    vBUF = 36
    def buf(r, kv, j): return vBUF + r * 32 + kv * 16 + j * 4
    a("v_lshlrev_b32 v%d, 4, v%d" % (vOff, vLane))
    a("s_lshr_b32 s4, s2, 3"); a("s_lshl_b32 s4, s4, 23")
    a("s_and_b32 s5, s2, 7"); a("s_lshl_b32 s5, s5, 20"); a("s_add_u32 s4, s4, s5")
    a("s_lshl_b32 s7, s3, 12"); a("s_mov_b32 s5, s4"); a("s_add_u32 s4, s4, s7")
    vIdx, vOne = 29, 30
    a("v_mov_b32 v3, 0"); a("v_mov_b32 v%d, 1" % vOne)
    a("s_mov_b32 s6, 0")
    if cfg.timeline: a("s_mov_b32 s14, 0"); a("v_mov_b32 v35, 0")
    a("s_waitcnt lgkmcnt(0)")
    srd(44, 18, 19, 0x10000000); srd(48, 20, 21, 0x10000000)
    NS = cfg.pool if cfg.pmode == "W" else 0
    NSM = cfg.pool if cfg.pmode == "M" else 0
    if NSM:
        a("s_lshr_b32 s13, s2, 3"); a("s_lshl_b32 s55, s13, 23")
    if NS:
        assert cfg.R == 2 and cfg.dyn
        nrem = 256 - NS; assert nrem & (nrem - 1) == 0
        PSZ = 8 * nrem // cfg.pshard
        assert 32 * cfg.pshard * cfg.pstride <= WS_SIZE - WS_POOL
        a("s_lshr_b32 s13, s2, 3"); a("s_lshl_b32 s55, s13, 23"); a("s_mov_b32 s15, s13")
        a("s_and_b32 s61, s3, %d" % (cfg.pshard - 1)); a("s_mul_i32 s62, s61, %d" % PSZ)
        a("s_mul_i32 s13, s13, %d" % cfg.pshard); a("s_add_u32 s13, s13, s61"); a("s_mul_i32 s13, s13, %d" % cfg.pstride); a("s_add_u32 s13, s13, %d" % WS_POOL)
        a("s_add_u32 s56, s42, s13"); a("s_addc_u32 s57, s43, 0")
        a("s_mov_b32 s54, 0"); a("s_mov_b32 s63, 0")
    def issue_setup():
        a("s_cmp_lt_u32 s6, 32"); a("s_cselect_b32 s7, s4, 0x%x" % OOB)
        a("s_add_u32 s4, s4, 32768"); a("s_add_u32 s6, s6, 1")
    def grab():
        if NS:
            lab = a.newlabel("L_nograb")
            a("s_cmp_lg_u32 s54, 0"); a("s_cbranch_scc1 %s" % lab)
        a("s_mov_b64 exec, 1"); a("ds_add_rtn_u32 v%d, v3, v%d offset:%d" % (vIdx, vOne, L_CTR)); a("s_mov_b64 exec, -1")
        if NS: a.label(lab)
    def pool_setup(r):
        lst, lgo, lpf, lat = a.newlabel("L_st"), a.newlabel("L_go"), a.newlabel("L_pf"), a.newlabel("L_at")
        G = cfg.pgrab
        lsec = a.newlabel("L_sec"); lmap = a.newlabel("L_map")
        a("s_cmp_eq_u32 s54, 0"); a("s_cbranch_scc1 %s" % lst)
        if G > 1:
            a("s_cmp_lg_u32 s63, 0"); a("s_cbranch_scc1 %s" % lsec)
        a("s_waitcnt lgkmcnt(0)")
        a("s_cmp_eq_u32 s54, 2"); a("s_cselect_b32 s12, %d, s58" % PSZ)
        if G > 1:
            a("s_add_u32 s59, s12, 1"); a("s_mov_b32 s63, %d" % (G - 1)); a("s_branch %s" % lmap)
            a.label(lsec)
            a("s_mov_b32 s12, s59"); a("s_add_u32 s59, s59, 1"); a("s_sub_u32 s63, s63, 1")
            a.label(lmap)
        sh = nrem.bit_length() - 1
        a("s_add_u32 s61, s12, s62")
        if cfg.pmap == "region":
            a("s_lshr_b32 s7, s61, %d" % sh); a("s_and_b32 s13, s61, %d" % (nrem - 1))
        elif cfg.pmap == "rot":
            a("s_lshr_b32 s7, s61, %d" % sh); a("s_add_u32 s7, s7, s15"); a("s_and_b32 s7, s7, 7")
            a("s_mul_i32 s13, s15, 5"); a("s_add_u32 s13, s13, s61"); a("s_and_b32 s13, s13, %d" % (nrem - 1))
        a("s_lshl_b32 s7, s7, 20"); a("s_add_u32 s13, s13, %d" % NS); a("s_lshl_b32 s13, s13, 12")
        a("s_add_u32 s7, s7, s13"); a("s_add_u32 s7, s7, s55")
        a("s_cmp_lt_u32 s12, %d" % PSZ); a("s_cselect_b32 s7, s7, 0x%x" % OOB); a("s_cselect_b32 s%d, 1, 0" % (52 + r)); a("s_cselect_b32 s54, 1, 2")
        lval = a.newlabel("L_val")
        a("s_cbranch_scc1 %s" % lval)
        if cfg.trig == "ex": a("ds_write_b32 v3, v%d offset:%d" % (vOne, L_EX))
        a("s_branch %s" % lgo)
        a.label(lval)
        if G > 1: a("s_cmp_eq_u32 s63, 0"); a("s_cbranch_scc0 %s" % lgo)
        a("s_branch %s" % lat)
        a.label(lst)
        a("s_waitcnt lgkmcnt(0)")
        a("v_readfirstlane_b32 s12, v%d" % vIdx)
        a("s_lshl_b32 s7, s12, 12"); a("s_add_u32 s7, s7, s5"); a("s_mov_b32 s%d, 1" % (52 + r))
        a("s_cmp_lt_u32 s12, %d" % (NS - cfg.nact)); a("s_cbranch_scc1 %s" % lgo)
        a("s_mov_b32 s54, 1")
        a("s_mov_b32 s60, 0")
        a.label(lpf)
        a("s_add_u32 s60, s60, 1"); a("s_cmp_gt_u32 s60, %d" % (cfg.spin_limit * 16)); a("s_cbranch_scc1 %s" % lat)
        a("ds_read_b32 v%d, v3 offset:%d" % (vIdx, L_PF)); a("s_waitcnt lgkmcnt(0)")
        a("v_readfirstlane_b32 s61, v%d" % vIdx); a("s_cmp_eq_u32 s61, 0"); a("s_cbranch_scc1 %s" % lpf)
        a.label(lat)
        a("s_mov_b32 s58, %d" % G); a("s_atomic_add s58, s[56:57], 0 glc")
        a.label(lgo)
    if cfg.fakeat:
        a("s_lshr_b32 s13, s2, 3"); a("s_mul_i32 s13, s13, %d" % cfg.pshard); a("s_and_b32 s61, s3, %d" % (cfg.pshard - 1)); a("s_add_u32 s13, s13, s61")
        a("s_mul_i32 s13, s13, %d" % cfg.pstride); a("s_add_u32 s13, s13, %d" % WS_POOL)
        a("s_add_u32 s56, s42, s13"); a("s_addc_u32 s57, s43, 0")
    def dyn_setup(r):
        a("s_waitcnt lgkmcnt(0)"); a("v_readfirstlane_b32 s12, v%d" % vIdx)
        if cfg.fakeat:
            lf = a.newlabel("L_fk")
            a("s_and_b32 s60, s12, %d" % (cfg.fakeat - 1)); a("s_cmp_lg_u32 s60, 0"); a("s_cbranch_scc1 %s" % lf)
            a("s_mov_b32 s58, 1"); a("s_atomic_add s58, s[56:57], 0 glc"); a.label(lf)
        if not NSM:
            a("s_lshl_b32 s7, s12, 12"); a("s_add_u32 s7, s7, s5")
            a("s_cmp_lt_u32 s12, 256"); a("s_cselect_b32 s7, s7, 0x%x" % OOB); a("s_cselect_b32 s%d, 1, 0" % (52 + r))
            return
        lp, lsp, lgo, lend = a.newlabel("L_mp"), a.newlabel("L_msp"), a.newlabel("L_mgo"), a.newlabel("L_mend")
        a("s_cmp_ge_u32 s12, %d" % NSM); a("s_cbranch_scc1 %s" % lp)
        a("s_lshl_b32 s7, s12, 12"); a("s_add_u32 s7, s7, s5"); a("s_mov_b32 s%d, 1" % (52 + r)); a("s_branch %s" % lgo)
        a.label(lp)
        a("s_sub_u32 s12, s12, %d" % NSM); a("s_lshl_b32 s12, s12, 2"); a("v_mov_b32 v%d, s12" % vT); a("s_mov_b32 s60, 0")
        a.label(lsp)
        a("s_add_u32 s60, s60, 1"); a("s_cmp_gt_u32 s60, %d" % (cfg.spin_limit * 64)); a("s_cbranch_scc1 %s" % lend)
        a("ds_read_b32 v%d, v%d offset:%d" % (vIdx, vT, L_TAB)); a("s_waitcnt lgkmcnt(0)")
        a("v_readfirstlane_b32 s13, v%d" % vIdx); a("s_cmp_eq_u32 s13, -1"); a("s_cbranch_scc1 %s" % lsp)
        a("s_cmp_eq_u32 s13, -2"); a("s_cbranch_scc1 %s" % lend)
        a("s_add_u32 s7, s13, s55"); a("s_mov_b32 s%d, 1" % (52 + r)); a("s_branch %s" % lgo)
        a.label(lend)
        a("s_mov_b32 s7, 0x%x" % OOB); a("s_mov_b32 s%d, 0" % (52 + r))
        a.label(lgo)
    def issue_grp(r, kv):
        for j in range(4):
            a("buffer_load_dwordx4 %s, v%d, %s, s7 offen offset:%d %s" % (V(buf(r, kv, j), 4), vOff, S4(44 + 4 * kv), j * 1024, cfg.ldflags))
    def issue(r):
        if NS: pool_setup(r)
        elif cfg.dyn: dyn_setup(r)
        else: issue_setup()
        issue_grp(r, 0); issue_grp(r, 1)
    if cfg.sprio: a("s_setprio %d" % cfg.sprio)
    a("s_barrier")
    stamp(1)
    first = True
    for r in range(cfg.NP):
        issue_setup()
        for kv in range(2):
            if not first and cfg.THR < 63: a("s_waitcnt vmcnt(%d)" % cfg.THR)
            first = False
            issue_grp(r, kv)
    stamp(2)
    a("v_mov_b32 v%d, 0xff800000" % vM); a("v_mov_b32 v%d, 0" % vL)
    for i in range(8): a("v_mov_b32 v%d, 0" % (vAcc + i))
    a("v_and_b32 v%d, 15, v%d" % (vT, vLane)); a("v_lshlrev_b32 v%d, 4, v%d" % (vT, vT))
    a("s_mov_b32 s8, %s" % f32(SCALE)); a("s_mov_b32 s9, %s" % f32(LOG2E)); a("s_mov_b32 s10, 0xffff0000")
    if cfg.qmode == "flag":
        a("s_mov_b32 s13, 0")
        a("L_QWAIT:")
        a("s_add_u32 s13, s13, 1"); a("s_cmp_gt_u32 s13, %d" % (cfg.spin_limit * 16)); a("s_cbranch_scc1 L_QOK")
        a("ds_read_b32 v%d, v3 offset:%d" % (vA, L_QF)); a("s_waitcnt lgkmcnt(0)")
        a("v_readfirstlane_b32 s12, v%d" % vA); a("s_cmp_lg_u32 s12, 0"); a("s_cbranch_scc1 L_QOK")
        a("s_sleep 2"); a("s_branch L_QWAIT")
    else:
        a("s_barrier")
    if cfg.sprio: a("s_setprio 0")
    a("L_QOK:")
    stamp(3)
    a("ds_read_b128 %s, v%d offset:%d" % (V(vQ, 4), vT, L_Q))
    a("s_waitcnt lgkmcnt(0)")
    def process(r, nk, nv, refill=False):
        if refill and cfg.dyn: grab()
        a("s_waitcnt vmcnt(%d)" % nk)
        for i in range(4):
            for j in range(4):
                a("v_dot2_f32_bf16 v%d, v%d, v%d, %s" % (vS + j, buf(r, 0, j) + i, vQ + i, "0" if i == 0 else "v%d" % (vS + j)))
        a("v_add_f32_dpp v%d, v%d, v%d row_ror:8 row_mask:0xf bank_mask:0x3" % (vA, vS + 0, vS + 0))
        a("v_add_f32_dpp v%d, v%d, v%d row_ror:8 row_mask:0xf bank_mask:0x3" % (vB, vS + 1, vS + 1))
        a("v_add_f32_dpp v%d, v%d, v%d row_ror:8 row_mask:0xf bank_mask:0xc" % (vA, vS + 2, vS + 2))
        a("v_add_f32_dpp v%d, v%d, v%d row_ror:8 row_mask:0xf bank_mask:0xc" % (vB, vS + 3, vS + 3))
        a("v_add_f32_dpp v%d, v%d, v%d row_half_mirror row_mask:0xf bank_mask:0x5" % (vC, vA, vA))
        a("v_add_f32_dpp v%d, v%d, v%d row_half_mirror row_mask:0xf bank_mask:0xa" % (vC, vB, vB))
        a("v_add_f32_dpp v%d, v%d, v%d quad_perm:[1,0,3,2] %s" % (vC, vC, vC, DPPF))
        a("v_add_f32_dpp v%d, v%d, v%d quad_perm:[2,3,0,1] %s" % (vC, vC, vC, DPPF))
        a("v_cvt_pk_bf16_f32 v%d, v%d, v%d" % (vC, vC, vC)); a("v_and_b32 v%d, s10, v%d" % (vC, vC))
        a("v_mul_f32 v%d, s8, v%d" % (vC, vC))
        a("v_cvt_pk_bf16_f32 v%d, v%d, v%d" % (vC, vC, vC)); a("v_and_b32 v%d, s10, v%d" % (vC, vC))
        a("v_max_f32_dpp v%d, v%d, v%d row_ror:4 %s" % (vA, vC, vC, DPPF))
        a("v_max_f32_dpp v%d, v%d, v%d row_ror:8 %s" % (vA, vA, vA, DPPF))
        a("v_max_f32 v%d, v%d, v%d" % (vMn, vM, vA))
        a("v_sub_f32 v%d, v%d, v%d" % (vAl, vM, vMn)); a("v_sub_f32 v%d, v%d, v%d" % (vP, vC, vMn))
        a("v_mul_f32 v%d, s9, v%d" % (vAl, vAl)); a("v_mul_f32 v%d, s9, v%d" % (vP, vP))
        a("v_exp_f32 v%d, v%d" % (vAl, vAl)); a("v_exp_f32 v%d, v%d" % (vP, vP))
        a("v_mov_b32 v%d, v%d" % (vM, vMn))
        a("v_fma_f32 v%d, v%d, v%d, v%d" % (vL, vL, vAl, vP))
        for i in range(8): a("v_mul_f32 v%d, v%d, v%d" % (vAcc + i, vAcc + i, vAl))
        a("s_waitcnt vmcnt(%d)" % nv)
        for j in range(4):
            for i in range(4):
                src = buf(r, 1, j) + i
                a("v_lshlrev_b32 v%d, 16, v%d" % (vU + 2 * i, src)); a("v_and_b32 v%d, s10, v%d" % (vU + 2 * i + 1, src))
            for k in range(8):
                a("v_fmac_f32_dpp v%d, v%d, v%d row_newbcast:%d %s" % (vAcc + k, vP, vU + k, 4 * j, DPPF))
        if cfg.timeline:
            a("s_memrealtime s[98:99]"); a("s_and_b32 m0, s14, 63"); a("s_add_u32 s14, s14, 1"); a("s_waitcnt lgkmcnt(0)")
            a("v_writelane_b32 v35, s98, m0")
    XA = 0
    out = [8] * cfg.NP
    for t in range(cfg.NP):
        n_after = sum(out[1:])
        process(t, n_after + 4, n_after, refill=(t < cfg.R and cfg.nact == 8))
        out.pop(0)
        if t < cfg.R:
            if cfg.nact < 8:
                l1, l2 = a.newlabel("L_act"), a.newlabel("L_actd")
                a("s_cmp_lt_u32 s3, %d" % cfg.nact); a("s_cbranch_scc1 %s" % l1)
                a("s_mov_b32 s7, 0x%x" % OOB); a("s_mov_b32 s%d, 0" % (52 + t)); issue_grp(t, 0); issue_grp(t, 1); a("s_branch %s" % l2)
                a.label(l1); grab(); issue(t); a.label(l2)
            else:
                issue(t)
            out.append(8 + XA)
    assert len(out) == cfg.R
    nloop = (32 - cfg.NP) // cfg.R
    assert nloop * cfg.R == 32 - cfg.NP
    a("s_mov_b32 s11, 0")
    a("L_SLOOP:")
    for r in range(cfg.R):
        if cfg.dyn: a("s_cmp_eq_u32 s%d, 0" % (52 + r)); a("s_cbranch_scc1 L_SDONE")
        process(r, (8 + XA) * (cfg.R - 1) + 4, (8 + XA) * (cfg.R - 1), refill=True)
        issue(r)
    if cfg.dyn: a("s_branch L_SLOOP")
    else: a("s_add_u32 s11, s11, 1"); a("s_cmp_lt_u32 s11, %d" % nloop); a("s_cbranch_scc1 L_SLOOP")
    a("L_SDONE:")
    stamp(4)
    a("v_mov_b32 v%d, v%d" % (vA, vM)); a("v_mov_b32 v%d, v%d" % (vB, vM))
    a("v_permlane16_swap_b32 v%d, v%d" % (vA, vB)); a("v_max_f32 v%d, v%d, v%d" % (vA, vA, vB))
    a("v_mov_b32 v%d, v%d" % (vB, vA))
    a("v_permlane32_swap_b32 v%d, v%d" % (vA, vB)); a("v_max_f32 v%d, v%d, v%d" % (vMn, vA, vB))
    a("v_sub_f32 v%d, v%d, v%d" % (vAl, vM, vMn)); a("v_mul_f32 v%d, s9, v%d" % (vAl, vAl)); a("v_exp_f32 v%d, v%d" % (vAl, vAl))
    a("v_mul_f32 v%d, v%d, v%d" % (vL, vL, vAl))
    for i in range(8): a("v_mul_f32 v%d, v%d, v%d" % (vAcc + i, vAcc + i, vAl))
    a("v_add_f32_dpp v%d, v%d, v%d row_ror:4 %s" % (vL, vL, vL, DPPF))
    a("v_add_f32_dpp v%d, v%d, v%d row_ror:8 %s" % (vL, vL, vL, DPPF))
    a("v_mov_b32 v%d, v%d" % (vB, vL)); a("v_permlane16_swap_b32 v%d, v%d" % (vL, vB)); a("v_add_f32 v%d, v%d, v%d" % (vL, vL, vB))
    a("v_mov_b32 v%d, v%d" % (vB, vL)); a("v_permlane32_swap_b32 v%d, v%d" % (vL, vB)); a("v_add_f32 v%d, v%d, v%d" % (vL, vL, vB))
    for p in range(4):
        a("v_permlane32_swap_b32 v%d, v%d" % (vAcc + 2 * p, vAcc + 2 * p + 1))
    for p in range(4):
        a("v_add_f32 v%d, v%d, v%d" % (vAcc + 2 * p, vAcc + 2 * p, vAcc + 2 * p + 1))
    a("v_permlane16_swap_b32 v%d, v%d" % (vAcc + 0, vAcc + 2)); a("v_permlane16_swap_b32 v%d, v%d" % (vAcc + 4, vAcc + 6))
    a("v_add_f32 v%d, v%d, v%d" % (vAcc + 0, vAcc + 0, vAcc + 2)); a("v_add_f32 v%d, v%d, v%d" % (vAcc + 4, vAcc + 4, vAcc + 6))
    a("v_lshrrev_b32 v%d, 4, v%d" % (vA, vLane))
    a("v_and_b32 v%d, 1, v%d" % (vB, vA)); a("v_lshlrev_b32 v%d, 1, v%d" % (vB, vB))
    a("v_lshrrev_b32 v%d, 1, v%d" % (vA, vA)); a("v_or_b32 v%d, v%d, v%d" % (vA, vA, vB))
    a("v_and_b32 v%d, 15, v%d" % (vB, vLane)); a("v_lshl_add_u32 v%d, v%d, 3, v%d" % (vA, vB, vA))
    a("v_lshlrev_b32 v%d, 2, v%d" % (vA, vA))
    a("s_lshl_b32 s12, s3, 9"); a("v_add_u32 v%d, s12, v%d" % (vA, vA))
    a("ds_write_b32 v%d, v%d offset:%d" % (vA, vAcc + 0, L_PART))
    a("ds_write_b32 v%d, v%d offset:%d" % (vA, vAcc + 4, L_PART + 16))
    a("v_mov_b32 v%d, v%d" % (vS, vMn)); a("v_mov_b32 v%d, v%d" % (vS + 1, vL))
    a("s_lshl_b32 s12, s3, 3"); a("v_mov_b32 v%d, s12" % vB)
    a("ds_write_b64 v%d, %s offset:%d" % (vB, V(vS, 2), L_PML))
    a("s_waitcnt lgkmcnt(0)")
    stamp(5)
    stamps_flush_S = True
    if cfg.stamps:
        srd(44, 42, 43, WS_SIZE)
        if cfg.timeline:
            a("s_lshl_b32 s12, s2, 3"); a("s_add_u32 s12, s12, s3"); a("s_lshl_b32 s12, s12, 8"); a("s_add_u32 s12, s12, %d" % WS_TL)
            a("v_lshlrev_b32 v2, 2, v%d" % vLane)
            a("buffer_store_dword v35, v2, %s, s12 offen" % S4(44))
        stamps_flush("s3", S4(44))
    a("s_endpgm")

    a("L_CW:")
    gen_control(a, cfg, stamp, stamps_flush, srd, S4, V, DPPF, bf16_round, wave_allreduce_add)
    a("L_END:")
    a("s_endpgm")
    return a


def gen_control(a, cfg, stamp, stamps_flush, srd, S4, V, DPPF, bf16_round, wave_allreduce_add):
    sSig, sHead, sNon = 4, 5, 6
    WS, DBG, W1, W2, XS = 44, 48, 52, 56, 60
    vLane, vZero, vG16, vTR32, vTR64, vOwnB, vOwn, vX, vActW, vActR, vGa = 1, 2, 3, 4, 5, 6, 7, 8, 12, 13, 14
    wf = cfg.wflags
    OOBS = "0x%x" % OOB
    def oob_unless(dst, src, cond):
        a("v_mov_b32 v35, %s" % OOBS); a("v_cndmask_b32 v%d, v35, v%d, %s" % (dst, src, cond))
    a("s_sub_u32 s3, s3, 8")
    if cfg.cprio: a("s_setprio %d" % cfg.cprio)
    a("s_and_b32 s7, s2, 7"); a("s_lshr_b32 s5, s2, 3")
    a("s_lshr_b32 s8, s5, 2"); a("s_lshl_b32 s8, s8, 3"); a("s_add_u32 s8, s8, s7"); a("s_lshl_b32 s8, s8, 2")
    a("s_and_b32 s9, s5, 3"); a("s_add_u32 s%d, s8, s9" % sSig)
    a("v_mov_b32 v%d, 0" % vZero)
    a("v_lshrrev_b32 v%d, 4, v%d" % (vG16, vLane))
    a("v_and_b32 v32, 15, v%d" % vLane); a("v_lshrrev_b32 v33, 2, v32"); a("v_and_b32 v34, 3, v32")
    a("v_lshl_add_u32 v33, v%d, 3, v33" % vG16)
    a("v_lshlrev_b32 v34, 3, v34")
    a("v_lshl_add_u32 v%d, v33, 5, v34" % vTR32); a("v_lshl_add_u32 v%d, v33, 6, v34" % vTR64)
    a("v_lshlrev_b32 v%d, 4, v%d" % (vG16, vG16))
    a("s_mul_i32 s7, s3, 160"); a("v_lshl_add_u32 v%d, v%d, 2, s7" % (vOwn, vLane))
    a("v_cmp_gt_u32 vcc, 40, v%d" % vLane); a("s_mov_b64 s[14:15], vcc")
    a("v_lshlrev_b32 v33, 1, v%d" % vOwn); oob_unless(vOwnB, 33, "s[14:15]")
    a("s_lshl_b32 s7, s3, 9"); a("v_lshl_add_u32 v%d, v%d, 3, s7" % (vActW, vLane)); a("v_add_u32 v%d, s7, v%d" % (vActR, vG16))
    a("v_lshrrev_b32 v33, 4, v%d" % vOwn); a("v_lshlrev_b32 v33, 7, v33"); a("v_and_b32 v34, 15, v%d" % vOwn); a("v_lshl_add_u32 v33, v34, 2, v33")
    oob_unless(vGa, 33, "s[14:15]")
    a("s_mov_b32 s13, 0xffff0000")
    a("s_waitcnt lgkmcnt(0)")
    srd(WS, 42, 43, WS_SIZE); srd(DBG, 40, 41, 256); srd(W1, 36, 37, 640 * 7680); srd(W2, 22, 23, 640 * 8192)
    vW, vCc, vXa, vXo = 16, 18, 20, 26
    a("buffer_load_dword v%d, v%d, %s, 0 offen sc1" % (vW, vZero, S4(WS)))
    srd(XS, 34, 35, 1280)
    a("buffer_load_dwordx2 %s, v%d, %s, 0 offen" % (V(vCc, 2), vOwnB, S4(XS)))
    a("v_lshrrev_b32 v32, 1, v%d" % vLane); a("v_and_b32 v33, 1, v%d" % vLane); a("v_lshlrev_b32 v33, 4, v33")
    a("s_mov_b32 s7, 7680"); a("v_mul_lo_u32 v28, v32, s7"); a("v_add_u32 v28, v28, v33")
    a("v_lshl_add_u32 v29, v32, 13, v33")
    a("s_mul_i32 s7, s3, %d" % (160 * 7680)); a("s_lshl_b32 s8, s%d, 5" % sSig); a("s_add_u32 s7, s7, s8")
    a("s_cmp_lt_u32 s%d, 240" % sSig); a("s_cselect_b32 s7, s7, %s" % OOBS)
    a("s_mul_i32 s9, s3, %d" % WPW)
    for kb in range(5):
        a("s_add_u32 m0, s9, %d" % (L_WM + kb * 1024))
        a("buffer_load_dwordx4 v28, %s, s7 offen %s lds" % (S4(W1), wf))
        if kb < 4: a("s_add_u32 s7, s7, %d" % (32 * 7680))
    srd(XS, 16, 17, 1280)
    a("v_lshlrev_b32 v30, 2, v%d" % vLane)
    for i in range(5): a("buffer_load_dword v%d, v30, %s, 0 offen offset:%d" % (vXa + i, S4(XS), 256 * i))
    a("buffer_load_dwordx2 %s, v%d, %s, 0 offen" % (V(vXo, 2), vOwnB, S4(XS)))
    a("s_mul_i32 s7, s3, %d" % (160 * 8192)); a("s_add_u32 s7, s7, s8")
    for kb in range(5):
        a("s_add_u32 m0, s9, %d" % (L_WQ + kb * 1024))
        a("buffer_load_dwordx4 v29, %s, s7 offen %s lds" % (S4(W2), wf))
        if kb < 4: a("s_add_u32 s7, s7, %d" % (32 * 8192))
    a("s_and_b32 s7, s2, 7"); a("s_lshr_b32 s8, s2, 6")
    a("s_add_u32 s9, s7, s%d" % sHead); a("s_and_b32 s9, s9, 7")
    a("s_mov_b32 s10, 3"); a("s_mov_b32 s11, 0"); a("s_mov_b32 s12, 0")
    lab_m, lab_f, lab_d = a.newlabel("L_rm"), a.newlabel("L_rf"), a.newlabel("L_rd")
    a("s_cmp_ge_u32 s9, 5"); a("s_cbranch_scc1 %s" % lab_m)
    a("s_mov_b32 s11, s7"); a("s_mul_i32 s12, s8, 5"); a("s_add_u32 s12, s12, s9")
    a("s_mov_b32 s10, 0"); a("s_branch %s" % lab_d)
    a.label(lab_m)
    a("s_lshl_b32 s7, s7, 2"); a("s_add_u32 s7, s7, s8")
    a("s_cmp_eq_u32 s9, 7"); a("s_cbranch_scc1 %s" % lab_f)
    a("s_cmp_ge_u32 s7, 27"); a("s_cbranch_scc1 %s" % lab_d)
    a("s_lshl_b32 s7, s7, 1"); a("s_sub_u32 s9, s9, 5"); a("s_add_u32 s11, s7, s9")
    a("s_mov_b32 s10, 1"); a("s_branch %s" % lab_d)
    a.label(lab_f)
    a("s_cmp_ge_u32 s7, 20"); a("s_cbranch_scc1 %s" % lab_d)
    a("s_mov_b32 s11, s7"); a("s_mov_b32 s10, 2")
    a.label(lab_d)
    for i in range(4): a("v_mov_b32 v%d, -1" % (36 + i))
    a("v_lshlrev_b32 v30, 4, v%d" % vLane)
    a("s_lshl_b32 s7, s2, 10"); a("s_add_u32 s7, s7, %d" % WS_REC)
    a("s_mul_i32 s9, s11, 2560"); a("s_lshl_b32 s8, s12, 7"); a("s_add_u32 s9, s9, s8"); a("s_add_u32 s9, s9, %d" % WS_Y1)
    a("s_cmp_eq_u32 s3, 1"); a("s_cselect_b32 s7, s9, s7")
    a("s_cmp_eq_u32 s10, 0"); a("s_cselect_b32 s9, 8, 0")
    a("s_cmp_eq_u32 s3, 1"); a("s_cselect_b32 s8, s9, 33")
    a("s_cmp_ge_u32 s3, 2"); a("s_cselect_b32 s8, 0, s8")
    a("v_cmp_gt_u32 vcc, s8, v%d" % vLane); oob_unless(31, 30, "vcc")
    a("buffer_store_dwordx4 v[36:39], v31, %s, s7 offen sc1" % S4(WS))
    a("s_mul_i32 s7, s11, 2560"); a("s_mul_i32 s8, s3, 640"); a("s_add_u32 s7, s7, s8"); a("s_add_u32 s7, s7, %d" % WS_Y2)
    a("s_cmp_eq_u32 s10, 1"); a("s_cselect_b32 s8, 40, 0")
    a("v_cmp_gt_u32 vcc, s8, v%d" % vLane); oob_unless(31, 30, "vcc")
    a("buffer_store_dwordx4 v[36:39], v31, %s, s7 offen sc1" % S4(WS))
    a("s_and_b32 s7, s2, 7"); a("s_cmp_eq_u32 s7, 0"); a("s_cselect_b32 s8, %d, 0" % cfg.pshard); a("s_cmp_eq_u32 s3, 2"); a("s_cselect_b32 s8, s8, 0")
    a("s_mul_i32 s7, s%d, %d" % (sHead, cfg.pshard * cfg.pstride)); a("s_add_u32 s7, s7, %d" % WS_POOL)
    a("s_mov_b32 s9, %d" % cfg.pstride); a("v_mul_lo_u32 v31, v%d, s9" % vLane)
    a("v_cmp_gt_u32 vcc, s8, v%d" % vLane); oob_unless(31, 31, "vcc")
    a("buffer_store_dword v%d, v31, %s, s7 offen sc1" % (vZero, S4(WS)))
    a("s_lshl_b32 s7, s3, 10"); a("v_add_u32 v31, s7, v30")
    a("ds_write_b128 v31, v[36:39] offset:%d" % L_X)
    a("v_and_b32 v31, 15, v%d" % vLane); a("v_lshlrev_b32 v31, 4, v31"); a("s_lshl_b32 s7, s3, 8"); a("v_add_u32 v31, s7, v31")
    a("ds_write_b128 v31, v[36:39] offset:%d" % (L_X + 4096))
    if cfg.pool and cfg.pmode == "M":
        a("s_lshl_b32 s7, s3, 11"); a("v_add_u32 v31, s7, v30")
        a("ds_write_b128 v31, v[36:39] offset:%d" % L_TAB); a("ds_write_b128 v31, v[36:39] offset:%d" % (L_TAB + 1024))
    a("v_mov_b32 v31, %d" % (cfg.NP * 8)); a("ds_write_b32 v%d, v31 offset:%d" % (vZero, L_CTR))
    a("ds_write_b32 v%d, v%d offset:%d" % (vZero, vZero, L_QF)); a("ds_write_b32 v%d, v%d offset:%d" % (vZero, vZero, L_PF)); a("ds_write_b32 v%d, v%d offset:%d" % (vZero, vZero, L_EX))
    a("s_waitcnt lgkmcnt(0)")
    if cfg.b0wait: a("s_waitcnt vmcnt(3)")
    stamp(1)
    a("s_barrier")
    NV = 21
    a("s_waitcnt vmcnt(%d)" % (NV - 2))
    a("v_readfirstlane_b32 s%d, v%d" % (sNon, vW))
    a("s_mul_i32 s%d, s%d, 0x9E3779B1" % (sNon, sNon)); a("s_add_u32 s%d, s%d, 0x7F4A7C15" % (sNon, sNon))
    def unpack2(dst, src):
        a("v_lshlrev_b32 v%d, 16, v%d" % (dst, src)); a("v_and_b32 v%d, s13, v%d" % (dst + 1, src))
    unpack2(28, vCc); unpack2(30, vCc + 1)
    for i in range(4): a("v_mul_f32 v%d, %s, v%d" % (32 + i, f32(-LOG2E), 28 + i))
    for i in range(4): a("v_exp_f32 v%d, v%d" % (32 + i, 32 + i))
    for i in range(4): a("v_add_f32 v%d, 1.0, v%d" % (32 + i, 32 + i))
    for i in range(4): a("v_rcp_f32 v%d, v%d" % (32 + i, 32 + i))
    for i in range(4): a("v_mul_f32 v%d, v%d, v%d" % (28 + i, 28 + i, 32 + i))
    a("v_cvt_pk_bf16_f32 v28, v28, v29"); a("v_cvt_pk_bf16_f32 v29, v30, v31")
    a("ds_write_b64 v%d, v[28:29] offset:%d" % (vActW, L_ACT))
    vB = 40
    for kb in range(5): a("ds_read_b128 %s, v%d offset:%d" % (V(vB + 4 * kb, 4), vActR, L_ACT + kb * 64))
    stamp(2)
    vWf = 72
    a("s_mul_i32 s7, s3, %d" % WPW); a("v_add_u32 v32, s7, v%d" % vTR32)
    a("s_waitcnt vmcnt(%d)" % (NV - 7))
    for kb in range(5):
        a("ds_read_b64_tr_b16 %s, v32 offset:%d" % (V(vWf + 4 * kb, 2), L_WM + kb * 1024))
        a("ds_read_b64_tr_b16 %s, v32 offset:%d" % (V(vWf + 4 * kb + 2, 2), L_WM + kb * 1024 + 128))
    vAcc = 36
    a("s_waitcnt lgkmcnt(0)")
    def mfma(acc, A, B, first):
        a("v_mfma_f32_16x16x32_bf16 %s, %s, %s, %s" % (V(acc, 4), V(A, 4), V(B, 4), "0" if first else V(acc, 4)))
    for kb in range(5): mfma(vAcc, vWf + 4 * kb, vB + 4 * kb, kb == 0)
    def exec4(on):
        if on: a("s_mov_b32 exec_lo, 0x00010001"); a("s_mov_b32 exec_hi, 0x00010001")
        else: a("s_mov_b64 exec, -1")
    def xwrite(base, per_wave, regs):
        a("s_mul_i32 s7, s3, %d" % per_wave); a("v_add_u32 v33, s7, v%d" % vG16)
        exec4(True)
        for k, r in enumerate(regs): a("ds_write_b128 v33, %s offset:%d" % (V(r, 4), base + 64 * k))
        exec4(False)
    def spin_begin(name):
        a("s_mov_b32 s9, 0"); a.label(name)
        a("s_add_u32 s9, s9, 1"); a("s_cmp_gt_u32 s9, %d" % cfg.spin_limit); a("s_cbranch_scc1 L_BAIL")
    def umax(regs, dst):
        regs = list(regs)
        a("v_max_u32 v%d, v%d, v%d" % (dst, regs[0], regs[1])); regs = regs[2:]
        while len(regs) >= 2:
            a("v_max3_u32 v%d, v%d, v%d, v%d" % (dst, dst, regs[0], regs[1])); regs = regs[2:]
        if regs: a("v_max_u32 v%d, v%d, v%d" % (dst, dst, regs[0]))
    def spin_until_no_sentinel(name, regs, t):
        umax(regs, t); a("v_cmp_eq_u32 vcc, -1, v%d" % t); a("s_cbranch_vccnz %s" % name)
    def xsum(name, base, stride, nl, dst):
        a("v_and_b32 v33, %d, v%d" % (nl - 1, vLane)); a("v_lshlrev_b32 v33, 4, v33")
        spin_begin(name)
        for w in range(4): a("ds_read_b128 %s, v33 offset:%d" % (V(dst + 4 * w, 4), base + stride * w))
        a("s_waitcnt lgkmcnt(0)")
        spin_until_no_sentinel(name, range(dst, dst + 16), 34)
        for i in range(4):
            a("v_add_f32 v%d, v%d, v%d" % (dst + i, dst + i, dst + 4 + i)); a("v_add_f32 v%d, v%d, v%d" % (dst + 8 + i, dst + 8 + i, dst + 12 + i))
        for i in range(4): a("v_add_f32 v%d, v%d, v%d" % (dst + i, dst + i, dst + 8 + i))
    def publish_granules(src, slot_base, nlanes_code):
        a("v_cvt_pk_bf16_f32 v%d, v%d, v%d" % (src, src, src + 1)); a("v_cvt_pk_bf16_f32 v%d, v%d, v%d" % (src + 2, src + 2, src + 3))
        a("v_mov_b32 v%d, s%d" % (src + 1, sNon)); a("v_mov_b32 v%d, s%d" % (src + 3, sNon))
        a("s_lshl_b32 s7, s%d, 7" % sSig); a("s_add_u32 s7, s7, %d" % slot_base)
        nlanes_code()
        a("v_lshlrev_b32 v33, 4, v%d" % vLane); a("v_cmp_gt_u32 vcc, s8, v%d" % vLane); oob_unless(33, 33, "vcc")
        a("buffer_store_dwordx4 %s, v33, %s, s7 offen sc1" % (V(src, 4), S4(WS)))
    xwrite(L_X1, 64, [vAcc])
    lab = a.newlabel("L_nm")
    a("s_cmp_lg_u32 s3, 0"); a("s_cbranch_scc1 %s" % lab)
    xsum(a.newlabel("L_sx1"), L_X1, 64, 4, 92)
    def okm(): a("s_cmp_lt_u32 s%d, 240" % sSig); a("s_cselect_b32 s8, 4, 0")
    publish_granules(92, WS_MOD, okm)
    a.label(lab)
    stamp(3)
    a("s_waitcnt vmcnt(8)")
    unpack2(vX, vXo); unpack2(vX + 2, vXo + 1)
    vE = 60
    for i in range(5): unpack2(vE + 2 * i, vXa + i)
    def ln_stats(vals, nmask_last, vmean, vden, t):
        first = True
        for k, x in enumerate(vals):
            src = x
            if nmask_last and k >= len(vals) - nmask_last[0]:
                a("v_cndmask_b32 v%d, 0, v%d, %s" % (t, x, nmask_last[1])); src = t
            if first: a("v_mov_b32 v%d, v%d" % (vmean, src)); first = False
            else: a("v_add_f32 v%d, v%d, v%d" % (vmean, vmean, src))
        wave_allreduce_add("v%d" % vmean, "v%d" % t)
        a("v_mul_f32 v%d, %s, v%d" % (vmean, f32(1.0 / 640), vmean))
        first = True
        for k, x in enumerate(vals):
            a("v_sub_f32 v%d, v%d, v%d" % (t, x, vmean))
            if nmask_last and k >= len(vals) - nmask_last[0]:
                a("v_cndmask_b32 v%d, 0, v%d, %s" % (t, t, nmask_last[1]))
            if first: a("v_mul_f32 v%d, v%d, v%d" % (vden, t, t)); first = False
            else: a("v_fma_f32 v%d, v%d, v%d, v%d" % (vden, t, t, vden))
        wave_allreduce_add("v%d" % vden, "v%d" % t)
        a("v_mul_f32 v%d, %s, v%d" % (vden, f32(1.0 / 640), vden))
        bf16_round("v%d" % vden, "v%d" % vden)
        a("v_add_f32 v%d, %s, v%d" % (vden, f32(1e-5), vden)); bf16_round("v%d" % vden, "v%d" % vden)
        a("v_sqrt_f32 v%d, v%d" % (vden, vden)); bf16_round("v%d" % vden, "v%d" % vden)
        bf16_round("v%d" % vmean, "v%d" % vmean)
    def ln_apply(dst, src, vmean, vden, t):
        a("v_rcp_f32 v%d, v%d" % (t, vden))
        for i in range(4):
            a("v_sub_f32 v%d, v%d, v%d" % (dst + i, src + i, vmean)); bf16_round("v%d" % (dst + i), "v%d" % (dst + i))
            a("v_mul_f32 v%d, v%d, v%d" % (t + 1, dst + i, t))
            a("v_fma_f32 v%d, -v%d, v%d, v%d" % (t + 2, t + 1, vden, dst + i))
            a("v_fma_f32 v%d, v%d, v%d, v%d" % (dst + i, t + 2, t, t + 1))
            bf16_round("v%d" % (dst + i), "v%d" % (dst + i))
    vLN = 24
    ln_stats([vE + i for i in range(10)], None, 28, 29, 32)
    ln_apply(vLN, vX, 28, 29, 32)
    a("s_mul_i32 s7, s3, %d" % WPW); a("v_add_u32 v32, s7, v%d" % vTR32)
    a("s_waitcnt vmcnt(3)")
    for kb in range(5):
        a("ds_read_b64_tr_b16 %s, v32 offset:%d" % (V(vWf + 4 * kb, 2), L_WQ + kb * 1024))
        a("ds_read_b64_tr_b16 %s, v32 offset:%d" % (V(vWf + 4 * kb + 2, 2), L_WQ + kb * 1024 + 128))
    stamp(4)
    def pipelined_poll(name, D, nloads, issue_fn, check_fn, take_fn):
        done = a.newlabel(name + "_done")
        oks = [a.newlabel(name + "_ok") for _ in range(D)]
        for k in range(D - 1):
            issue_fn(k)
            if cfg.psleep: a("s_sleep %d" % cfg.psleep)
        spin_begin(name)
        for k in range(D):
            issue_fn((k + D - 1) % D)
            a("s_waitcnt vmcnt(%d)" % (nloads * (D - 1)))
            check_fn(k)
            a("s_cbranch_vccz %s" % oks[k])
        a("s_branch %s" % name)
        for k in range(D):
            a.label(oks[k]); take_fn(k)
            if k < D - 1: a("s_branch %s" % done)
        a.label(done)
    def poll_mod(name, specs, vaddr, mask, D=1, scratch=None):
        n = len(specs)
        def reg(k, i): return specs[i][0] if D == 1 else scratch + (k * n + i) * 4
        def issue_fn(k):
            for i, (dst, col) in enumerate(specs):
                a("s_mov_b32 s7, %d" % (WS_MOD + (col >> 4) * 128))
                a("buffer_load_dwordx4 %s, v%d, %s, s7 offen sc1" % (V(reg(k, i), 4), vaddr, S4(WS)))
        def check_fn(k):
            first = True
            for i in range(n):
                for t in (1, 3):
                    if first: a("v_xor_b32 v34, s%d, v%d" % (sNon, reg(k, i) + t)); first = False
                    else: a("v_xor_b32 v35, s%d, v%d" % (sNon, reg(k, i) + t)); a("v_or_b32 v34, v34, v35")
            a("v_cmp_ne_u32 vcc, 0, v34"); a("s_and_b64 vcc, vcc, %s" % mask)
        def take_fn(k):
            if D == 1: return
            for i, (dst, col) in enumerate(specs):
                for t in (0, 2): a("v_mov_b32 v%d, v%d" % (dst + t, reg(k, i) + t))
        pipelined_poll(name, D, n, issue_fn, check_fn, take_fn)
    vSa, vCa = 92, 96
    poll_mod(a.newlabel("L_pm"), [(vSa, 0), (vCa, 640)], vGa, "s[14:15]", D=cfg.pd_mod, scratch=112)
    stamp(5)
    def modulate(dst, ln, vca, vsa, t):
        unpack2(t, vca); unpack2(t + 2, vca + 2); unpack2(t + 4, vsa); unpack2(t + 6, vsa + 2)
        for i in range(4):
            a("v_add_f32 v%d, 1.0, v%d" % (t + i, t + i)); bf16_round("v%d" % (t + i), "v%d" % (t + i))
            a("v_mul_f32 v%d, v%d, v%d" % (dst + i, ln + i, t + i)); bf16_round("v%d" % (dst + i), "v%d" % (dst + i))
            a("v_add_f32 v%d, v%d, v%d" % (dst + i, dst + i, t + 4 + i))
    modulate(108, vLN, vCa, vSa, 100)
    a("v_cvt_pk_bf16_f32 v28, v108, v109"); a("v_cvt_pk_bf16_f32 v29, v110, v111")
    a("ds_write_b64 v%d, v[28:29] offset:%d" % (vActW, L_ACT))
    for kb in range(5): a("ds_read_b128 %s, v%d offset:%d" % (V(vB + 4 * kb, 4), vActR, L_ACT + kb * 64))
    a("s_waitcnt lgkmcnt(0)")
    for kb in range(5): mfma(vAcc, vWf + 4 * kb, vB + 4 * kb, kb == 0)
    xwrite(L_X2, 64, [vAcc])
    lab = a.newlabel("L_nq")
    a("s_cmp_lg_u32 s3, 0"); a("s_cbranch_scc1 %s" % lab)
    xsum(a.newlabel("L_sx2"), L_X2, 64, 4, 92)
    def okq(): a("s_mov_b32 s8, 4")
    publish_granules(92, WS_Q, okq)
    a("v_mov_b32 v34, 1"); a("v_cmp_eq_u32 vcc, 0, v%d" % vLane); oob_unless(33, vZero, "vcc")
    a("buffer_atomic_add v34, v33, %s, 0 offen" % S4(DBG))
    stamp(6)
    a("v_lshrrev_b32 v33, 3, v%d" % vLane); a("v_lshlrev_b32 v33, 7, v33"); a("v_and_b32 v34, 7, v%d" % vLane); a("v_lshl_add_u32 v33, v34, 3, v33")
    a("s_lshl_b32 s8, s%d, 10" % sHead); a("s_add_u32 s8, s8, %d" % WS_Q)
    a("v_mov_b32 v31, v33")
    pipelined_poll(a.newlabel("L_pq"), cfg.pd_q, 1,
                   lambda k: a("buffer_load_dwordx2 %s, v31, %s, s8 offen sc1" % (V(144 + 2 * k, 2), S4(WS))),
                   lambda k: a("v_cmp_ne_u32 vcc, s%d, v%d" % (sNon, 145 + 2 * k)),
                   lambda k: a("v_mov_b32 v92, v%d" % (144 + 2 * k)))
    a("v_lshlrev_b32 v33, 2, v%d" % vLane)
    a("ds_write_b32 v33, v92 offset:%d" % L_Q)
    a("s_waitcnt lgkmcnt(0)")
    a("v_mov_b32 v33, 1"); a("ds_write_b32 v%d, v33 offset:%d" % (vZero, L_QF))
    a.label(lab)
    stamp(7)
    if cfg.qmode == "barrier": a("s_barrier")

    MGR = bool(cfg.pool) and cfg.pmode == "M"
    lab = a.newlabel("L_stay")
    a("s_cmp_eq_u32 s3, 0"); a("s_cbranch_scc1 %s" % lab)
    if MGR: a("s_cmp_eq_u32 s3, 3"); a("s_cbranch_scc1 %s" % lab)
    a("s_cmp_eq_u32 s10, 3"); a("s_cbranch_scc1 L_CEND")
    a("s_cmp_lg_u32 s10, 2"); a("s_cbranch_scc1 %s" % lab)
    a("s_cmp_ge_u32 s3, 2"); a("s_cbranch_scc1 L_CEND")
    a.label(lab)
    nm = a.newlabel("L_pc")
    spin_begin(nm)
    a("buffer_load_dword v33, v%d, %s, 0 offen sc1" % (vZero, S4(DBG)))
    a("s_waitcnt vmcnt(0)")
    a("v_cmp_gt_u32 vcc, 256, v33"); a("s_cbranch_vccnz %s" % nm)
    a("v_mov_b32 v33, 1"); a("ds_write_b32 v%d, v33 offset:%d" % (vZero, L_PF))
    vF = 40
    vGaG, vSb, vCb = 16, 20, 24
    def dma_wo():
        srd(W1, 24, 25, 4096 * 1280)
        a("v_lshrrev_b32 v33, 2, v%d" % vLane); a("s_mov_b32 s7, 1280"); a("v_mul_lo_u32 v33, v33, s7"); a("v_and_b32 v34, 3, v%d" % vLane); a("v_lshl_add_u32 v33, v34, 4, v33")
        a("s_lshl_b32 s7, s11, 2"); a("s_add_u32 s7, s7, s3"); a("s_mul_i32 s7, s7, %d" % (128 * 1280)); a("s_lshl_b32 s8, s12, 6"); a("s_add_u32 s7, s7, s8")
        a("s_mul_i32 s9, s3, %d" % WPW)
        for i in range(8):
            a("s_add_u32 m0, s9, %d" % (L_TW + i * 1024))
            a("buffer_load_dwordx4 v33, %s, s7 offen %s lds" % (S4(W1), wf))
            if i < 7: a("s_add_u32 s7, s7, %d" % (16 * 1280))
    def frags_wo():
        a("s_mul_i32 s9, s3, %d" % WPW); a("v_add_u32 v32, s9, v%d" % vTR64)
        for cgp in range(2):
            for kb in range(4):
                r = vF + (cgp * 4 + kb) * 4
                a("ds_read_b64_tr_b16 %s, v32 offset:%d" % (V(r, 2), L_TW + kb * 2048 + cgp * 32))
                a("ds_read_b64_tr_b16 %s, v32 offset:%d" % (V(r + 2, 2), L_TW + kb * 2048 + cgp * 32 + 256))
            a("s_waitcnt lgkmcnt(0)")
    def dma_mlp():
        srd(W1, 28, 29, 640 * 3456); srd(W2, 30, 31, 640 * 3456)
        a("v_lshrrev_b32 v33, 2, v%d" % vLane); a("s_mov_b32 s7, 3456"); a("v_mul_lo_u32 v33, v33, s7"); a("v_and_b32 v34, 3, v%d" % vLane); a("v_lshl_add_u32 v33, v34, 4, v33")
        a("s_mul_i32 s7, s3, %d" % (160 * 3456)); a("s_lshl_b32 s8, s11, 6"); a("s_add_u32 s7, s7, s8")
        a("s_mul_i32 s9, s3, %d" % WPW)
        for i in range(10):
            a("s_add_u32 m0, s9, %d" % (L_TW + i * 1024))
            a("buffer_load_dwordx4 v33, %s, s7 offen %s lds" % (S4(W1), wf))
            a("s_add_u32 m0, s9, %d" % (L_TW + 10240 + i * 1024))
            a("buffer_load_dwordx4 v33, %s, s7 offen %s lds" % (S4(W2), wf))
            if i < 9: a("s_add_u32 s7, s7, %d" % (16 * 3456))
        srd(W1, 32, 33, 1728 * 1280)
        a("v_lshrrev_b32 v33, 1, v%d" % vLane); a("s_mov_b32 s7, 1280"); a("v_mul_lo_u32 v33, v33, s7"); a("v_and_b32 v34, 1, v%d" % vLane); a("v_lshl_add_u32 v33, v34, 4, v33")
        a("s_mul_i32 s7, s11, %d" % (32 * 1280)); a("s_mul_i32 s8, s3, 320"); a("s_add_u32 s7, s7, s8")
        for i in range(10):
            a("s_add_u32 m0, s9, %d" % (L_TW + 20480 + i * 1024))
            a("buffer_load_dwordx4 v33, %s, s7 offen %s lds" % (S4(W1), wf))
            if i < 9: a("s_add_u32 s7, s7, 32")
    def frags_mlp():
        a("s_mul_i32 s9, s3, %d" % WPW); a("v_add_u32 v32, s9, v%d" % vTR64); a("v_add_u32 v15, s9, v%d" % vTR32)
        for m in range(2):
            for cgp in range(2):
                for kb in range(5):
                    r = vF + m * 40 + (cgp * 5 + kb) * 4
                    a("ds_read_b64_tr_b16 %s, v32 offset:%d" % (V(r, 2), L_TW + m * 10240 + kb * 2048 + cgp * 32))
                    a("ds_read_b64_tr_b16 %s, v32 offset:%d" % (V(r + 2, 2), L_TW + m * 10240 + kb * 2048 + cgp * 32 + 256))
                a("s_waitcnt lgkmcnt(0)")
    def by_role(f_wo, f_mlp):
        l1, l2 = a.newlabel("L_br"), a.newlabel("L_brd")
        a("s_cmp_lg_u32 s10, 0"); a("s_cbranch_scc1 %s" % l1)
        f_wo(); a("s_branch %s" % l2)
        a.label(l1)
        a("s_cmp_lg_u32 s10, 1"); a("s_cbranch_scc1 %s" % l2)
        f_mlp()
        a.label(l2)
    wm_wo = cfg.wmode_wo or cfg.wmode
    wm_mlp = cfg.wmode_mlp or cfg.wmode
    nop = lambda: None
    l_nm, l_nf = a.newlabel("L_nmlp"), a.newlabel("L_nfin")
    a("s_cmp_lg_u32 s10, 1"); a("s_cbranch_scc1 %s" % l_nm)
    poll_mod(a.newlabel("L_pm2"), [(vGaG, 1280), (vSb, 1920), (vCb, 2560)], vGa, "s[14:15]")
    a.label(l_nm)
    a("s_cmp_lg_u32 s10, 2"); a("s_cbranch_scc1 %s" % l_nf)
    a("s_cmp_ge_u32 s3, 2"); a("s_cbranch_scc1 %s" % l_nf)
    a("s_lshl_b32 s11, s11, 1"); a("s_add_u32 s11, s11, s3")
    a("v_and_b32 v15, 15, v%d" % vLane); a("v_lshrrev_b32 v33, 1, v15"); a("v_lshlrev_b32 v33, 3, v33"); a("s_lshl_b32 s7, s11, 7"); a("v_add_u32 v33, s7, v33")
    nm = a.newlabel("L_pm3")
    spin_begin(nm)
    a("s_mov_b32 s7, %d" % (WS_MOD + (1280 >> 4) * 128)); a("buffer_load_dwordx2 v[16:17], v33, %s, s7 offen sc1" % S4(WS))
    a("s_mov_b32 s7, %d" % (WS_MOD + (3200 >> 4) * 128)); a("buffer_load_dwordx2 v[18:19], v33, %s, s7 offen sc1" % S4(WS))
    a("s_waitcnt vmcnt(0)")
    a("v_xor_b32 v34, s%d, v17" % sNon); a("v_xor_b32 v35, s%d, v19" % sNon); a("v_or_b32 v34, v34, v35")
    a("v_cmp_ne_u32 vcc, 0, v34"); a("s_cbranch_vccnz %s" % nm)
    a("v_and_b32 v34, 1, v15"); a("v_cmp_eq_u32 vcc, 1, v34")
    for r in (16, 18):
        a("v_lshlrev_b32 v34, 16, v%d" % r); a("v_and_b32 v%d, s13, v%d" % (r, r)); a("v_cndmask_b32 v%d, v34, v%d, vcc" % (r, r))
    srd(XS, 16, 17, 1280)
    a("s_lshl_b32 s7, s11, 5"); a("v_lshlrev_b32 v34, 1, v15")
    a("buffer_load_ushort v20, v34, %s, s7 offen" % S4(XS)); a("s_waitcnt vmcnt(0)"); a("v_lshlrev_b32 v20, 16, v20")
    a.label(l_nf)
    if wm_wo == "early" or wm_mlp == "early":
        by_role((lambda: (dma_wo(), a("s_waitcnt vmcnt(0)"), frags_wo())) if wm_wo == "early" else nop,
                (lambda: (dma_mlp(), a("s_waitcnt vmcnt(0)"), frags_mlp())) if wm_mlp == "early" else nop)
    if MGR:
        NSM = cfg.pool; nrem = 256 - NSM; PSZ = 8 * nrem; sh = nrem.bit_length() - 1
        assert nrem & (nrem - 1) == 0 and (PSZ + 128) * 4 <= 8192
        lm_skip, lm_loop, lm_end = a.newlabel("L_mgs"), a.newlabel("L_mgl"), a.newlabel("L_mge")
        a("s_cmp_lg_u32 s3, 3"); a("s_cbranch_scc1 %s" % lm_skip)
        a("s_mul_i32 s7, s%d, %d" % (sHead, cfg.pstride)); a("s_add_u32 s7, s7, %d" % WS_POOL)
        a("s_add_u32 s60, s42, s7"); a("s_addc_u32 s61, s43, 0")
        a("s_mov_b32 s62, 0"); a("s_mov_b32 s63, %d" % PSZ)
        a("s_mov_b32 s9, 0")
        a.label(lm_loop)
        a("s_add_u32 s9, s9, 1"); a("s_cmp_gt_u32 s9, %d" % (cfg.spin_limit * 16)); a("s_cbranch_scc1 L_BAIL")
        a("ds_read_b32 v33, v%d offset:%d" % (vZero, L_CTR)); a("s_waitcnt lgkmcnt(0)")
        a("v_readfirstlane_b32 s7, v33"); a("s_add_u32 s7, s7, %d" % cfg.look); a("s_add_u32 s8, s62, %d" % NSM)
        lm_go = a.newlabel("L_mgg")
        a("s_cmp_gt_u32 s7, s8"); a("s_cbranch_scc1 %s" % lm_go)
        a("s_sleep 3"); a("s_branch %s" % lm_loop)
        a.label(lm_go)
        a("s_lshr_b32 s7, s63, %d" % cfg.gshift); a("s_max_u32 s7, s7, %d" % cfg.gmin); a("s_min_u32 s7, s7, 64")
        a("s_mov_b32 s8, s7"); a("s_atomic_add s8, s[60:61], 0 glc"); a("s_waitcnt lgkmcnt(0)")
        a("v_add_u32 v33, s8, v%d" % vLane)
        a("v_lshrrev_b32 v34, %d, v33" % sh); a("v_add_u32 v34, s%d, v34" % sHead); a("v_and_b32 v34, 7, v34"); a("v_lshlrev_b32 v34, 20, v34")
        a("v_and_b32 v35, %d, v33" % (nrem - 1)); a("v_add_u32 v35, %d, v35" % NSM); a("v_lshl_add_u32 v34, v35, 12, v34")
        a("v_cmp_gt_u32 vcc, %d, v33" % PSZ); a("v_mov_b32 v35, -2"); a("v_cndmask_b32 v34, v35, v34, vcc")
        a("v_add_u32 v35, s62, v%d" % vLane); a("v_lshlrev_b32 v35, 2, v35")
        a("v_cmp_gt_u32 vcc, s7, v%d" % vLane); a("s_and_saveexec_b64 s[100:101], vcc")
        a("ds_write_b32 v35, v34 offset:%d" % L_TAB)
        a("s_mov_b64 exec, -1")
        a("s_add_u32 s62, s62, s7"); a("s_add_u32 s8, s8, s7")
        a("s_cmp_ge_u32 s8, %d" % PSZ); a("s_cbranch_scc1 %s" % lm_end)
        a("s_sub_u32 s63, %d, s8" % PSZ); a("s_mov_b32 s9, 0"); a("s_branch %s" % lm_loop)
        a.label(lm_end)
        a("v_add_u32 v35, s62, v%d" % vLane); a("v_lshlrev_b32 v35, 2, v35"); a("v_mov_b32 v34, -2")
        a("ds_write_b32 v35, v34 offset:%d" % L_TAB)
        a("v_mov_b32 v34, 1"); a("ds_write_b32 v%d, v34 offset:%d" % (vZero, L_EX))
        a("s_cmp_ge_u32 s10, 2"); a("s_cbranch_scc1 L_CEND")
        a.label(lm_skip)
    if wm_wo == "ex" or wm_mlp == "ex":
        nm = a.newlabel("L_trig"); l_nt = a.newlabel("L_ntrig")
        a("s_cmp_ge_u32 s10, 2"); a("s_cbranch_scc1 %s" % l_nt)
        if wm_wo != "ex": a("s_cmp_eq_u32 s10, 0"); a("s_cbranch_scc1 %s" % l_nt)
        if wm_mlp != "ex": a("s_cmp_eq_u32 s10, 1"); a("s_cbranch_scc1 %s" % l_nt)
        a("s_mov_b32 s9, 0")
        a.label(nm)
        a("s_add_u32 s9, s9, 1"); a("s_cmp_gt_u32 s9, %d" % (cfg.spin_limit * 16)); a("s_cbranch_scc1 L_BAIL")
        a("s_sleep 2")
        a("ds_read_b32 v33, v%d offset:%d" % (vZero, L_EX)); a("s_waitcnt lgkmcnt(0)")
        a("v_readfirstlane_b32 s7, v33"); a("s_cmp_eq_u32 s7, 0"); a("s_cbranch_scc1 %s" % nm)
        if cfg.tprio is not None: a("s_setprio %d" % cfg.tprio)
        by_role(dma_wo if wm_wo == "ex" else nop, dma_mlp if wm_mlp == "ex" else nop)
        if cfg.tprio is not None: a("s_setprio %d" % cfg.cprio)
        a.label(l_nt)

    a.label("L_T1")
    stamp(8)
    a("s_barrier")
    stamp(9)
    lab = a.newlabel("L_noT1")
    a("s_cmp_lg_u32 s3, 0"); a("s_cbranch_scc1 %s" % lab)
    oi = [120, 124, 128, 132]
    a("v_and_b32 v33, 7, v%d" % vLane); a("v_lshlrev_b32 v33, 3, v33")
    a("ds_read_b64 v[34:35], v33 offset:%d" % L_PML)
    a("v_and_b32 v33, 31, v%d" % vLane); a("v_lshlrev_b32 v33, 4, v33"); a("v_lshrrev_b32 v32, 5, v%d" % vLane); a("v_lshl_add_u32 v33, v32, 11, v33")
    for i in range(4): a("ds_read_b128 %s, v33 offset:%d" % (V(oi[i], 4), L_PART + i * 512))
    a("s_mov_b32 s8, %s" % f32(LOG2E))
    a("s_waitcnt lgkmcnt(4)")
    def combine8(vMl, oi, tA, tB, tC, normalize):
        a("v_max_f32_dpp v%d, v%d, v%d quad_perm:[1,0,3,2] %s" % (tA, vMl, vMl, DPPF))
        a("v_max_f32_dpp v%d, v%d, v%d quad_perm:[2,3,0,1] %s" % (tA, tA, tA, DPPF))
        a("v_max_f32_dpp v%d, v%d, v%d row_half_mirror %s" % (tA, tA, tA, DPPF))
        a("v_sub_f32 v%d, v%d, v%d" % (tC, vMl, tA)); a("v_mul_f32 v%d, s8, v%d" % (tC, tC)); a("v_exp_f32 v%d, v%d" % (tC, tC))
        a("v_mul_f32 v%d, v%d, v%d" % (tB, tC, vMl + 1))
        a("v_add_f32_dpp v%d, v%d, v%d quad_perm:[1,0,3,2] %s" % (tB, tB, tB, DPPF))
        a("v_add_f32_dpp v%d, v%d, v%d quad_perm:[2,3,0,1] %s" % (tB, tB, tB, DPPF))
        a("v_add_f32_dpp v%d, v%d, v%d row_half_mirror %s" % (tB, tB, tB, DPPF))
        if normalize:
            a("v_rcp_f32 v%d, v%d" % (vMl, tB))
            a("v_mul_f32 v%d, v%d, v%d" % (vMl + 1, tC, vMl))
            a("v_fma_f32 v%d, -v%d, v%d, v%d" % (tA, vMl + 1, tB, tC))
            a("v_fma_f32 v%d, v%d, v%d, v%d" % (tC, tA, vMl, vMl + 1))
        else:
            a("s_waitcnt lgkmcnt(0)")
        for i in range(4):
            a("v_mov_b32_dpp v%d, v%d row_newbcast:%d row_mask:0x3 bank_mask:0xf" % (vMl, tC, i))
            a("v_mov_b32_dpp v%d, v%d row_newbcast:%d row_mask:0xc bank_mask:0xf" % (vMl, tC, i + 4))
            for k in range(4):
                if i == 0: a("v_mul_f32 v%d, v%d, v%d" % (oi[0] + k, oi[0] + k, vMl))
                else: a("v_fma_f32 v%d, v%d, v%d, v%d" % (oi[0] + k, oi[i] + k, vMl, oi[0] + k))
    combine8(34, oi, 36, 37, 38, False)
    for k in range(4): a("v_mov_b32 v%d, v%d" % (oi[1] + k, oi[0] + k))
    for k in range(4): a("v_permlane32_swap_b32 v%d, v%d" % (oi[0] + k, oi[1] + k))
    for k in range(4): a("v_add_f32 v%d, v%d, v%d" % (oi[0] + k, oi[0] + k, oi[1] + k))
    a("v_cmp_gt_u32 vcc, 32, v%d" % vLane)
    a("v_cndmask_b32 v%d, v36, v%d, vcc" % (oi[0], oi[0])); a("v_cndmask_b32 v%d, v37, v%d, vcc" % (oi[0] + 1, oi[0] + 1))
    a("v_lshlrev_b32 v33, 4, v%d" % vLane); a("v_cmp_gt_u32 vcc, 33, v%d" % vLane); oob_unless(33, 33, "vcc")
    a("s_lshl_b32 s7, s2, 10"); a("s_add_u32 s7, s7, %d" % WS_REC)
    a("buffer_store_dwordx4 %s, v33, %s, s7 offen sc1" % (V(oi[0], 4), S4(WS)))
    a.label(lab)
    stamp(10)
    if wm_wo == "b2" or wm_mlp == "b2":
        by_role(dma_wo if wm_wo == "b2" else nop, dma_mlp if wm_mlp == "b2" else nop)
    a("s_cmp_eq_u32 s10, 0"); a("s_cbranch_scc1 L_T2")
    a("s_cmp_eq_u32 s10, 3"); a("s_cbranch_scc1 L_CEND")
    def poll_ml(head_sgpr, name, sleep):
        a("v_and_b32 v33, 7, v%d" % vLane); a("v_lshlrev_b32 v33, 10, v33")
        a("s_lshl_b32 s8, %s, 13" % head_sgpr); a("s_add_u32 s8, s8, %d" % (WS_REC + 512))
        spin_begin(name)
        if sleep: a("s_sleep %d" % sleep)
        a("buffer_load_dwordx2 v[34:35], v33, %s, s8 offen sc1" % S4(WS))
        a("s_waitcnt vmcnt(0)")
        a("v_max_u32 v32, v34, v35"); a("v_cmp_eq_u32 vcc, -1, v32"); a("s_cbranch_vccnz %s" % name)
    poll_ml("s%d" % sHead, a.newlabel("L_gate"), 2)
    a("s_cmp_eq_u32 s10, 1"); a("s_cbranch_scc1 L_T3")
    a("s_branch L_T4")

    a.label("L_T2")
    a("s_lshl_b32 s4, s11, 2"); a("s_add_u32 s4, s4, s3")
    if wm_wo != "early": a("s_waitcnt vmcnt(0)"); frags_wo()
    poll_ml("s4", a.newlabel("L_pml"), 1)
    stamp(11)
    oi = [120, 124, 128, 132]
    a("v_and_b32 v33, 31, v%d" % vLane); a("v_lshlrev_b32 v33, 4, v33"); a("v_lshrrev_b32 v32, 5, v%d" % vLane); a("v_lshl_add_u32 v33, v32, 12, v33")
    a("s_lshl_b32 s8, s4, 13"); a("s_add_u32 s8, s8, %d" % WS_REC)
    nm = a.newlabel("L_po")
    spin_begin(nm)
    for i in range(4): a("buffer_load_dwordx4 %s, v33, %s, s8 offen offset:%d sc1" % (V(oi[i], 4), S4(WS), i * 1024))
    a("s_waitcnt vmcnt(0)")
    spin_until_no_sentinel(nm, range(120, 136), 32)
    a("s_mov_b32 s8, %s" % f32(LOG2E))
    combine8(34, oi, 36, 37, 38, True)
    a("v_permlane32_swap_b32 v%d, v%d" % (oi[0] + 0, oi[0] + 2)); a("v_permlane32_swap_b32 v%d, v%d" % (oi[0] + 1, oi[0] + 3))
    a("v_add_f32 v36, v%d, v%d" % (oi[0] + 0, oi[0] + 2)); a("v_add_f32 v37, v%d, v%d" % (oi[0] + 1, oi[0] + 3))
    a("v_cvt_pk_bf16_f32 v36, v36, v37")
    a("v_and_b32 v33, 31, v%d" % vLane); a("v_lshlrev_b32 v33, 3, v33"); a("v_lshrrev_b32 v37, 5, v%d" % vLane); a("v_lshl_add_u32 v33, v37, 2, v33")
    a("s_lshl_b32 s7, s3, 9"); a("v_add_u32 v33, s7, v33")
    a("ds_write_b32 v33, v36 offset:%d" % L_ACT)
    vB2 = 136
    for kb in range(4): a("ds_read_b128 %s, v%d offset:%d" % (V(vB2 + 4 * kb, 4), vActR, L_ACT + kb * 64))
    a("s_waitcnt lgkmcnt(0)")
    for kb in range(4):
        for cgp in range(2): mfma(152 + 4 * cgp, vF + (cgp * 4 + kb) * 4, vB2 + 4 * kb, kb == 0)
    xwrite(L_X3, 128, [152, 156])
    a("s_cmp_lg_u32 s3, 0"); a("s_cbranch_scc1 L_CEND")
    xsum(a.newlabel("L_sx3"), L_X3, 128, 8, 120)
    a("s_mul_i32 s7, s11, 2560"); a("s_lshl_b32 s8, s12, 7"); a("s_add_u32 s7, s7, s8"); a("s_add_u32 s7, s7, %d" % WS_Y1)
    a("v_lshlrev_b32 v33, 4, v%d" % vLane); a("v_cmp_gt_u32 vcc, 8, v%d" % vLane); oob_unless(33, 33, "vcc")
    a("buffer_store_dwordx4 v[120:123], v33, %s, s7 offen sc1" % S4(WS))
    stamp(12)
    a("s_branch L_CEND")

    def tree8(base, stride, k):
        r = [base + i * stride + k for i in range(8)]
        for x, y in ((0, 1), (2, 3), (4, 5), (6, 7), (0, 2), (4, 6), (0, 4)):
            a("v_add_f32 v%d, v%d, v%d" % (r[x], r[x], r[y]))
    a.label("L_T3")
    if wm_mlp != "early": a("s_waitcnt vmcnt(0)"); frags_mlp()
    stamp(11)
    a("v_lshlrev_b32 v33, 2, v%d" % vOwn); oob_unless(33, 33, "s[14:15]")
    nm = a.newlabel("L_py1")
    spin_begin(nm)
    for r in range(8):
        a("s_mov_b32 s7, %d" % (WS_Y1 + r * 2560))
        a("buffer_load_dwordx4 %s, v33, %s, s7 offen sc1" % (V(120 + 4 * r, 4), S4(WS)))
    a("s_waitcnt vmcnt(0)")
    spin_until_no_sentinel(nm, range(120, 152), 32)
    stamp(12)
    unpack2(152, vGaG); unpack2(154, vGaG + 2)
    vX1 = 28
    for k in range(4):
        tree8(120, 4, k)
        bf16_round("v%d" % (120 + k), "v%d" % (120 + k))
        a("v_mul_f32 v%d, v%d, v%d" % (120 + k, 152 + k, 120 + k)); bf16_round("v%d" % (120 + k), "v%d" % (120 + k))
        a("v_add_f32 v%d, v%d, v%d" % (vX1 + k, vX + k, 120 + k)); bf16_round("v%d" % (vX1 + k), "v%d" % (vX1 + k))
    a("v_lshlrev_b32 v33, 2, v%d" % vOwn)
    a("s_mov_b64 exec, s[14:15]")
    a("ds_write_b128 v33, %s offset:%d" % (V(vX1, 4), L_X4))
    a("s_mov_b64 exec, -1")
    a("v_lshlrev_b32 v33, 4, v%d" % vLane); a("v_and_b32 v32, 31, v%d" % vLane); a("v_lshlrev_b32 v32, 4, v32")
    a("v_cmp_gt_u32 vcc, 32, v%d" % vLane); a("s_mov_b64 s[60:61], vcc")
    nm = a.newlabel("L_sx4")
    spin_begin(nm)
    a("ds_read_b128 v[120:123], v33 offset:%d" % L_X4); a("ds_read_b128 v[124:127], v33 offset:%d" % (L_X4 + 1024))
    a("ds_read_b128 v[128:131], v32 offset:%d" % (L_X4 + 2048))
    a("s_waitcnt lgkmcnt(0)")
    spin_until_no_sentinel(nm, range(120, 132), 34)
    ln_stats(list(range(120, 132)), (4, "s[60:61]"), 132, 133, 34)
    ln_apply(136, vX1, 132, 133, 36)
    modulate(140, 136, vCb, vSb, 144)
    a("v_cvt_pk_bf16_f32 v36, v140, v141"); a("v_cvt_pk_bf16_f32 v37, v142, v143")
    a("ds_write_b64 v%d, v[36:37] offset:%d" % (vActW, L_ACT))
    vB3 = 120
    for kb in range(5): a("ds_read_b128 %s, v%d offset:%d" % (V(vB3 + 4 * kb, 4), vActR, L_ACT + kb * 64))
    a("s_waitcnt lgkmcnt(0)")
    stamp(13)
    for kb in range(5):
        for m in range(2):
            for cgp in range(2): mfma(140 + (m * 2 + cgp) * 4, vF + m * 40 + (cgp * 5 + kb) * 4, vB3 + 4 * kb, kb == 0)
    xwrite(L_X5, 256, [140, 144, 148, 152])
    for jg in range(10):
        r = vF + jg * 4
        a("ds_read_b64_tr_b16 %s, v15 offset:%d" % (V(r, 2), L_TW + 20480 + jg * 1024))
        a("ds_read_b64_tr_b16 %s, v15 offset:%d" % (V(r + 2, 2), L_TW + 20480 + jg * 1024 + 128))
        if jg == 4: a("s_waitcnt lgkmcnt(0)")
    a("v_and_b32 v33, 31, v%d" % vLane); a("v_lshlrev_b32 v33, 2, v33")
    nm = a.newlabel("L_sx5")
    spin_begin(nm)
    for w in range(4):
        a("ds_read_b32 v%d, v33 offset:%d" % (120 + w, L_X5 + 256 * w)); a("ds_read_b32 v%d, v33 offset:%d" % (124 + w, L_X5 + 256 * w + 128))
    a("s_waitcnt lgkmcnt(0)")
    spin_until_no_sentinel(nm, range(120, 128), 34)
    for b in (120, 124):
        a("v_add_f32 v%d, v%d, v%d" % (b, b, b + 1)); a("v_add_f32 v%d, v%d, v%d" % (b + 2, b + 2, b + 3)); a("v_add_f32 v%d, v%d, v%d" % (b, b, b + 2))
        bf16_round("v%d" % b, "v%d" % b)
    a("v_mul_f32 v34, v120, v120"); a("v_mov_b32 v35, 1.0"); a("v_fmac_f32 v35, %s, v34" % f32(0.044715))
    a("v_mul_f32 v35, v35, v120"); a("v_mul_f32 v35, %s, v35" % f32(-2.0 * 0.7978845608028654 * LOG2E))
    a("v_exp_f32 v35, v35"); a("v_add_f32 v35, 1.0, v35"); a("v_rcp_f32 v35, v35"); a("v_mul_f32 v35, v120, v35")
    bf16_round("v35", "v35")
    a("v_mul_f32 v35, v35, v124"); a("v_cvt_pk_bf16_f32 v35, v35, v35")
    a("v_lshrrev_b32 v33, 1, v33"); a("s_lshl_b32 s7, s3, 6"); a("v_add_u32 v33, s7, v33")
    a("ds_write_b16 v33, v35 offset:%d" % L_ACT2)
    a("v_add_u32 v33, s7, v%d" % vG16)
    a("ds_read_b128 v[128:131], v33 offset:%d" % L_ACT2)
    a("s_waitcnt lgkmcnt(0)")
    for jg in range(10): mfma(80 + 4 * jg, vF + 4 * jg, 128, True)
    a("s_mul_i32 s7, s11, 2560"); a("s_mul_i32 s8, s3, 640"); a("s_add_u32 s7, s7, s8"); a("s_add_u32 s7, s7, %d" % WS_Y2)
    exec4(True)
    for jg in range(10): a("buffer_store_dwordx4 %s, v%d, %s, s7 offen offset:%d sc1" % (V(80 + 4 * jg, 4), vG16, S4(WS), 64 * jg))
    exec4(False)
    stamp(14)
    a("s_branch L_CEND")

    a.label("L_T4")
    stamp(11)
    a("v_lshlrev_b32 v33, 2, v15"); a("s_lshl_b32 s8, s11, 6")
    nm = a.newlabel("L_py1f")
    spin_begin(nm)
    for r in range(8):
        a("s_add_u32 s7, s8, %d" % (WS_Y1 + r * 2560))
        a("buffer_load_dword v%d, v33, %s, s7 offen sc1" % (120 + r, S4(WS)))
    a("s_waitcnt vmcnt(0)")
    spin_until_no_sentinel(nm, range(120, 128), 32)
    tree8(120, 1, 0)
    bf16_round("v120", "v120"); a("v_mul_f32 v120, v16, v120"); bf16_round("v120", "v120")
    a("v_add_f32 v21, v20, v120"); bf16_round("v21", "v21")
    stamp(12)
    a("v_lshrrev_b32 v32, 4, v%d" % vLane); a("s_mov_b32 s7, 2560"); a("v_mul_lo_u32 v34, v32, s7"); a("v_add_u32 v33, v33, v34")
    a("v_cmp_gt_u32 vcc, 2, v32"); oob_unless(22, 33, "vcc")
    nm = a.newlabel("L_py2")
    spin_begin(nm)
    for i in range(14):
        a("s_add_u32 s7, s8, %d" % (WS_Y2 + i * 4 * 2560))
        a("buffer_load_dword v%d, v%d, %s, s7 offen sc1" % (120 + i, 33 if i < 13 else 22, S4(WS)))
    a("s_waitcnt vmcnt(0)")
    spin_until_no_sentinel(nm, range(120, 134), 32)
    stamp(13)
    for x, y in ((0, 1), (2, 3), (4, 5), (6, 7), (8, 9), (10, 11), (12, 13), (0, 2), (4, 6), (8, 10), (0, 4), (8, 12), (0, 8)):
        a("v_add_f32 v%d, v%d, v%d" % (120 + x, 120 + x, 120 + y))
    a("v_mov_b32 v34, v120"); a("v_permlane16_swap_b32 v120, v34"); a("v_add_f32 v120, v120, v34")
    a("v_mov_b32 v34, v120"); a("v_permlane32_swap_b32 v120, v34"); a("v_add_f32 v120, v120, v34")
    bf16_round("v120", "v120"); a("v_mul_f32 v120, v18, v120"); bf16_round("v120", "v120")
    a("v_add_f32 v120, v21, v120"); a("v_cvt_pk_bf16_f32 v120, v120, v120")
    srd(XS, 38, 39, 1280)
    a("v_lshlrev_b32 v33, 1, v15"); a("v_cmp_gt_u32 vcc, 16, v%d" % vLane); oob_unless(33, 33, "vcc")
    a("s_lshl_b32 s7, s11, 5")
    a("buffer_store_short v120, v33, %s, s7 offen" % S4(XS))
    a("s_cmp_lg_u32 s11, 0"); a("s_cbranch_scc1 L_CEND")
    a("v_mov_b32 v34, s%d" % sNon); a("v_cmp_eq_u32 vcc, 0, v%d" % vLane); oob_unless(33, vZero, "vcc")
    a("buffer_store_dword v34, v33, %s, 0 offen sc1" % S4(WS))
    a.label("L_CEND")
    stamp(15)
    if cfg.stamps:
        a("s_add_u32 s3, s3, 8")
        stamps_flush("s3", S4(WS))
    a("s_endpgm")
    a.label("L_BAIL")
    a("s_mov_b64 exec, -1")
    a("v_mov_b32 v34, 1"); a("ds_write_b32 v%d, v34 offset:%d" % (vZero, L_QF)); a("ds_write_b32 v%d, v34 offset:%d" % (vZero, L_PF))
    a("v_mov_b32 v34, 1"); a("v_cmp_eq_u32 vcc, 0, v%d" % vLane); a("v_mov_b32 v33, 4"); oob_unless(33, 33, "vcc")
    a("buffer_atomic_add v34, v33, %s, 0 offen" % S4(DBG))
    a("s_endpgm")

HEADER = """; adaLN-conditioned block: cached multi-head attention (decode) + GEGLU MLP, one persistent launch.
; @launch grid=(256,1,1) block=(768,1,1) lds=%d
.amdgcn_target "amdgcn-amd-amdhsa--gfx950"
.text
.globl %s
.p2align 8
.type %s,@function
%s:
"""
FOOTER = """
.section .rodata,"a"
.p2align 6
.amdhsa_kernel %s
  .amdhsa_next_free_vgpr 168
  .amdhsa_next_free_sgpr 102
  .amdhsa_accum_offset 168
  .amdhsa_group_segment_fixed_size 0
  .amdhsa_kernarg_size 112
  .amdhsa_user_sgpr_count 2
  .amdhsa_user_sgpr_kernarg_segment_ptr 1
  .amdhsa_system_sgpr_workgroup_id_x 1
.end_amdhsa_kernel
"""
def build(**kw):
    cfg = Cfg(**kw)
    a = gen(cfg)
    return HEADER % (LDS_ALLOC, KNAME, KNAME, KNAME) + a.text() + FOOTER % KNAME

if __name__ == "__main__":
    out = sys.argv[1] if len(sys.argv) > 1 else "adaLN_cond__mha_block_cached__glu_gated_geglu__decode.s"
    kw = {}
    for x in sys.argv[2:]:
        k, v = x.split("=", 1)
        kw[k] = eval(v)
    open(out, "w").write(build(**kw))
    print("wrote", out, "LDS", LDS_ALLOC)
```

```python
import sys, struct
from asmlib import Asm

KNAME = "adaLN_cond__mha_block_cached__glu_gated_geglu__decode_kernel"
def f32(x): return "0x%08x" % struct.unpack("<I", struct.pack("<f", x))[0]
LOG2E = 1.4426950408889634
SCALE = 128 ** -0.5
SENT = 0xFFFFFFFF
OOB = 0x40000000

WS_W, WS_MOD, WS_Q, WS_REC, WS_Y1, WS_Y2, WS_STAMP = 0, 0x1000, 0x9000, 0x20000, 0x60000, 0x68000, 0x100000
WS_POOL = 0x180000
WS_TL = 0x140000
WS_SIZE = 0x200000
L_Q = 0
L_ACT = L_Q + 256
L_X = L_ACT + 2048
L_X1, L_X2, L_X3, L_X5, L_X4 = L_X, L_X + 256, L_X + 512, L_X + 1024, L_X + 2048
L_ACT2 = L_X + 5120
L_PART = L_ACT2 + 256
L_PML = L_PART + 4096
L_CTR = L_PML + 64
L_QF = L_CTR + 4
L_PF = L_QF + 4
L_EX = L_PF + 4
L_TAB = 12288
L_W0 = L_TAB + 8192
assert L_EX + 4 <= L_TAB
WPW = 30720
L_WM, L_WQ = L_W0, L_W0 + 5120
L_TW = L_W0
LDS_BYTES = L_W0 + 122880
LDS_ALLOC = (LDS_BYTES + 1279) // 1280 * 1280

class Cfg:
    NP = 4
    R = 2
    THR = 4
    stamps = False
    spin_limit = 200000
    ldflags = "nt"
    wflags = ""
    cprio = 0
    b0wait = False
    dyn = True
    pd_mod = 3
    pd_q = 4
    psleep = 10
    pmap = "region"
    nact = 8
    fakeat = 0
    dbgtime = False
    timeline = False
    pmode = "M"
    look = 14
    gmin = 4
    gshift = 4
    wmode = "early"
    wmode_wo = None
    wmode_mlp = None
    pshard = 4
    pstride = 256
    pgrab = 2
    pool = 0
    qmode = "barrier"
    tprio = None
    sprio = 0
    trig = 0
    def __init__(self, **kw):
        for k, v in kw.items():
            assert hasattr(self, k), k
            setattr(self, k, v)

def gen(cfg):
    a = Asm()
    NSTAMP = 16
    stamp_regs = {}
    def stamp(i):
        if cfg.stamps or (cfg.dbgtime and i in (0, 3, 7, 10, 15)):
            a("s_memrealtime s[%d:%d]" % (64 + 2 * i, 65 + 2 * i))
    def stamps_flush(wave_slot_sgpr, srd):
        if not cfg.stamps: return
        a("s_waitcnt lgkmcnt(0)")
        a("v_mov_b32 v1, 0")
        for i in range(NSTAMP):
            a("s_mov_b32 m0, %d" % i)
            a("v_writelane_b32 v1, s%d, m0" % (64 + 2 * i))
        a("s_mul_i32 s96, s2, 12"); a("s_add_u32 s96, s96, %s" % wave_slot_sgpr); a("s_lshl_b32 s96, s96, 6"); a("s_add_u32 s96, s96, %d" % WS_STAMP)
        a("v_and_b32 v2, 63, v0"); a("v_lshlrev_b32 v2, 2, v2")
        a("v_cmp_gt_u32 vcc, 64, v2"); a("v_mov_b32 v3, %d" % OOB); a("v_cndmask_b32 v2, v3, v2, vcc")
        a("buffer_store_dword v1, v2, %s, s96 offen" % srd)
        a("s_waitcnt vmcnt(0)")
    def srd(dst, lo, hi, size):
        a("s_mov_b32 s%d, s%d" % (dst, lo)); a("s_and_b32 s%d, s%d, 0xffff" % (dst + 1, hi))
        a("s_mov_b32 s%d, 0x%x" % (dst + 2, size)); a("s_mov_b32 s%d, 0x20000" % (dst + 3))
    def S4(n): return "s[%d:%d]" % (n, n + 3)
    def V(n, k=1): return "v%d" % n if k == 1 else "v[%d:%d]" % (n, n + k - 1)
    DPPF = "row_mask:0xf bank_mask:0xf"
    def bf16_round(dst, src, tmp=None):
        a("v_cvt_pk_bf16_f32 %s, %s, %s" % (dst, src, src)); a("v_and_b32 %s, 0xffff0000, %s" % (dst, dst))
    def wave_allreduce_add(v, t):
        a("v_add_f32_dpp %s, %s, %s quad_perm:[1,0,3,2] %s" % (v, v, v, DPPF))
        a("v_add_f32_dpp %s, %s, %s quad_perm:[2,3,0,1] %s" % (v, v, v, DPPF))
        a("v_add_f32_dpp %s, %s, %s row_ror:4 %s" % (v, v, v, DPPF))
        a("v_add_f32_dpp %s, %s, %s row_ror:8 %s" % (v, v, v, DPPF))
        a("v_mov_b32 %s, %s" % (t, v)); a("v_permlane16_swap_b32 %s, %s" % (v, t)); a("v_add_f32 %s, %s, %s" % (v, v, t))
        a("v_mov_b32 %s, %s" % (t, v)); a("v_permlane32_swap_b32 %s, %s" % (v, t)); a("v_add_f32 %s, %s, %s" % (v, v, t))

    a("s_cmp_ge_u32 s2, 256"); a("s_cbranch_scc1 L_END")
    a("s_load_dwordx16 s[16:31], s[0:1], 0")
    a("s_load_dwordx8 s[32:39], s[0:1], 64")
    a("s_load_dwordx4 s[40:43], s[0:1], 96")
    stamp(0)
    a("v_lshrrev_b32 v1, 6, v0")
    a("v_readfirstlane_b32 s3, v1")
    a("v_and_b32 v1, 63, v0")
    a("s_cmp_ge_u32 s3, 8"); a("s_cbranch_scc1 L_CW")

    vLane, vOff, vQ, vM, vL, vAcc = 1, 2, 4, 8, 9, 10
    vS, vA, vB, vC, vT, vP, vAl, vMn = 18, 22, 23, 24, 25, 26, 27, 28
    vU = 18
    vBUF = 36
    def buf(r, kv, j): return vBUF + r * 32 + kv * 16 + j * 4
    a("v_lshlrev_b32 v%d, 4, v%d" % (vOff, vLane))
    a("s_lshr_b32 s4, s2, 3"); a("s_lshl_b32 s4, s4, 23")
    a("s_and_b32 s5, s2, 7"); a("s_lshl_b32 s5, s5, 20"); a("s_add_u32 s4, s4, s5")
    a("s_lshl_b32 s7, s3, 12"); a("s_mov_b32 s5, s4"); a("s_add_u32 s4, s4, s7")
    vIdx, vOne = 29, 30
    a("v_mov_b32 v3, 0"); a("v_mov_b32 v%d, 1" % vOne)
    a("s_mov_b32 s6, 0")
    if cfg.timeline: a("s_mov_b32 s14, 0"); a("v_mov_b32 v35, 0")
    a("s_waitcnt lgkmcnt(0)")
    srd(44, 18, 19, 0x10000000); srd(48, 20, 21, 0x10000000)
    NS = cfg.pool if cfg.pmode == "W" else 0
    NSM = cfg.pool if cfg.pmode == "M" else 0
    if NSM:
        a("s_lshr_b32 s13, s2, 3"); a("s_lshl_b32 s55, s13, 23")
    if NS:
        assert cfg.R == 2 and cfg.dyn
        nrem = 256 - NS; assert nrem & (nrem - 1) == 0
        PSZ = 8 * nrem // cfg.pshard
        assert 32 * cfg.pshard * cfg.pstride <= WS_SIZE - WS_POOL
        a("s_lshr_b32 s13, s2, 3"); a("s_lshl_b32 s55, s13, 23"); a("s_mov_b32 s15, s13")
        a("s_and_b32 s61, s3, %d" % (cfg.pshard - 1)); a("s_mul_i32 s62, s61, %d" % PSZ)
        a("s_mul_i32 s13, s13, %d" % cfg.pshard); a("s_add_u32 s13, s13, s61"); a("s_mul_i32 s13, s13, %d" % cfg.pstride); a("s_add_u32 s13, s13, %d" % WS_POOL)
        a("s_add_u32 s56, s42, s13"); a("s_addc_u32 s57, s43, 0")
        a("s_mov_b32 s54, 0"); a("s_mov_b32 s63, 0")
    def issue_setup():
        a("s_cmp_lt_u32 s6, 32"); a("s_cselect_b32 s7, s4, 0x%x" % OOB)
        a("s_add_u32 s4, s4, 32768"); a("s_add_u32 s6, s6, 1")
    def grab():
        if NS:
            lab = a.newlabel("L_nograb")
            a("s_cmp_lg_u32 s54, 0"); a("s_cbranch_scc1 %s" % lab)
        a("s_mov_b64 exec, 1"); a("ds_add_rtn_u32 v%d, v3, v%d offset:%d" % (vIdx, vOne, L_CTR)); a("s_mov_b64 exec, -1")
        if NS: a.label(lab)
    def pool_setup(r):
        lst, lgo, lpf, lat = a.newlabel("L_st"), a.newlabel("L_go"), a.newlabel("L_pf"), a.newlabel("L_at")
        G = cfg.pgrab
        lsec = a.newlabel("L_sec"); lmap = a.newlabel("L_map")
        a("s_cmp_eq_u32 s54, 0"); a("s_cbranch_scc1 %s" % lst)
        if G > 1:
            a("s_cmp_lg_u32 s63, 0"); a("s_cbranch_scc1 %s" % lsec)
        a("s_waitcnt lgkmcnt(0)")
        a("s_cmp_eq_u32 s54, 2"); a("s_cselect_b32 s12, %d, s58" % PSZ)
        if G > 1:
            a("s_add_u32 s59, s12, 1"); a("s_mov_b32 s63, %d" % (G - 1)); a("s_branch %s" % lmap)
            a.label(lsec)
            a("s_mov_b32 s12, s59"); a("s_add_u32 s59, s59, 1"); a("s_sub_u32 s63, s63, 1")
            a.label(lmap)
        sh = nrem.bit_length() - 1
        a("s_add_u32 s61, s12, s62")
        if cfg.pmap == "region":
            a("s_lshr_b32 s7, s61, %d" % sh); a("s_and_b32 s13, s61, %d" % (nrem - 1))
        elif cfg.pmap == "rot":
            a("s_lshr_b32 s7, s61, %d" % sh); a("s_add_u32 s7, s7, s15"); a("s_and_b32 s7, s7, 7")
            a("s_mul_i32 s13, s15, 5"); a("s_add_u32 s13, s13, s61"); a("s_and_b32 s13, s13, %d" % (nrem - 1))
        a("s_lshl_b32 s7, s7, 20"); a("s_add_u32 s13, s13, %d" % NS); a("s_lshl_b32 s13, s13, 12")
        a("s_add_u32 s7, s7, s13"); a("s_add_u32 s7, s7, s55")
        a("s_cmp_lt_u32 s12, %d" % PSZ); a("s_cselect_b32 s7, s7, 0x%x" % OOB); a("s_cselect_b32 s%d, 1, 0" % (52 + r)); a("s_cselect_b32 s54, 1, 2")
        lval = a.newlabel("L_val")
        a("s_cbranch_scc1 %s" % lval)
        if cfg.trig == "ex": a("ds_write_b32 v3, v%d offset:%d" % (vOne, L_EX))
        a("s_branch %s" % lgo)
        a.label(lval)
        if G > 1: a("s_cmp_eq_u32 s63, 0"); a("s_cbranch_scc0 %s" % lgo)
        a("s_branch %s" % lat)
        a.label(lst)
        a("s_waitcnt lgkmcnt(0)")
        a("v_readfirstlane_b32 s12, v%d" % vIdx)
        a("s_lshl_b32 s7, s12, 12"); a("s_add_u32 s7, s7, s5"); a("s_mov_b32 s%d, 1" % (52 + r))
        a("s_cmp_lt_u32 s12, %d" % (NS - cfg.nact)); a("s_cbranch_scc1 %s" % lgo)
        a("s_mov_b32 s54, 1")
        a("s_mov_b32 s60, 0")
        a.label(lpf)
        a("s_add_u32 s60, s60, 1"); a("s_cmp_gt_u32 s60, %d" % (cfg.spin_limit * 16)); a("s_cbranch_scc1 %s" % lat)
        a("ds_read_b32 v%d, v3 offset:%d" % (vIdx, L_PF)); a("s_waitcnt lgkmcnt(0)")
        a("v_readfirstlane_b32 s61, v%d" % vIdx); a("s_cmp_eq_u32 s61, 0"); a("s_cbranch_scc1 %s" % lpf)
        a.label(lat)
        a("s_mov_b32 s58, %d" % G); a("s_atomic_add s58, s[56:57], 0 glc")
        a.label(lgo)
    if cfg.fakeat:
        a("s_lshr_b32 s13, s2, 3"); a("s_mul_i32 s13, s13, %d" % cfg.pshard); a("s_and_b32 s61, s3, %d" % (cfg.pshard - 1)); a("s_add_u32 s13, s13, s61")
        a("s_mul_i32 s13, s13, %d" % cfg.pstride); a("s_add_u32 s13, s13, %d" % WS_POOL)
        a("s_add_u32 s56, s42, s13"); a("s_addc_u32 s57, s43, 0")
    def dyn_setup(r):
        a("s_waitcnt lgkmcnt(0)"); a("v_readfirstlane_b32 s12, v%d" % vIdx)
        if cfg.fakeat:
            lf = a.newlabel("L_fk")
            a("s_and_b32 s60, s12, %d" % (cfg.fakeat - 1)); a("s_cmp_lg_u32 s60, 0"); a("s_cbranch_scc1 %s" % lf)
            a("s_mov_b32 s58, 1"); a("s_atomic_add s58, s[56:57], 0 glc"); a.label(lf)
        if not NSM:
            a("s_lshl_b32 s7, s12, 12"); a("s_add_u32 s7, s7, s5")
            a("s_cmp_lt_u32 s12, 256"); a("s_cselect_b32 s7, s7, 0x%x" % OOB); a("s_cselect_b32 s%d, 1, 0" % (52 + r))
            return
        lp, lsp, lgo, lend = a.newlabel("L_mp"), a.newlabel("L_msp"), a.newlabel("L_mgo"), a.newlabel("L_mend")
        a("s_cmp_ge_u32 s12, %d" % NSM); a("s_cbranch_scc1 %s" % lp)
        a("s_lshl_b32 s7, s12, 12"); a("s_add_u32 s7, s7, s5"); a("s_mov_b32 s%d, 1" % (52 + r)); a("s_branch %s" % lgo)
        a.label(lp)
        a("s_sub_u32 s12, s12, %d" % NSM); a("s_lshl_b32 s12, s12, 2"); a("v_mov_b32 v%d, s12" % vT); a("s_mov_b32 s60, 0")
        a.label(lsp)
        a("s_add_u32 s60, s60, 1"); a("s_cmp_gt_u32 s60, %d" % (cfg.spin_limit * 64)); a("s_cbranch_scc1 %s" % lend)
        a("ds_read_b32 v%d, v%d offset:%d" % (vIdx, vT, L_TAB)); a("s_waitcnt lgkmcnt(0)")
        a("v_readfirstlane_b32 s13, v%d" % vIdx); a("s_cmp_eq_u32 s13, -1"); a("s_cbranch_scc1 %s" % lsp)
        a("s_cmp_eq_u32 s13, -2"); a("s_cbranch_scc1 %s" % lend)
        a("s_add_u32 s7, s13, s55"); a("s_mov_b32 s%d, 1" % (52 + r)); a("s_branch %s" % lgo)
        a.label(lend)
        a("s_mov_b32 s7, 0x%x" % OOB); a("s_mov_b32 s%d, 0" % (52 + r))
        a.label(lgo)
    def issue_grp(r, kv):
        for j in range(4):
            a("buffer_load_dwordx4 %s, v%d, %s, s7 offen offset:%d %s" % (V(buf(r, kv, j), 4), vOff, S4(44 + 4 * kv), j * 1024, cfg.ldflags))
    def issue(r):
        if NS: pool_setup(r)
        elif cfg.dyn: dyn_setup(r)
        else: issue_setup()
        issue_grp(r, 0); issue_grp(r, 1)
    if cfg.sprio: a("s_setprio %d" % cfg.sprio)
    a("s_barrier")
    stamp(1)
    first = True
    for r in range(cfg.NP):
        issue_setup()
        for kv in range(2):
            if not first and cfg.THR < 63: a("s_waitcnt vmcnt(%d)" % cfg.THR)
            first = False
            issue_grp(r, kv)
    stamp(2)
    a("v_mov_b32 v%d, 0xff800000" % vM); a("v_mov_b32 v%d, 0" % vL)
    for i in range(8): a("v_mov_b32 v%d, 0" % (vAcc + i))
    a("v_and_b32 v%d, 15, v%d" % (vT, vLane)); a("v_lshlrev_b32 v%d, 4, v%d" % (vT, vT))
    a("s_mov_b32 s8, %s" % f32(SCALE)); a("s_mov_b32 s9, %s" % f32(LOG2E)); a("s_mov_b32 s10, 0xffff0000")
    if cfg.qmode == "flag":
        a("s_mov_b32 s13, 0")
        a("L_QWAIT:")
        a("s_add_u32 s13, s13, 1"); a("s_cmp_gt_u32 s13, %d" % (cfg.spin_limit * 16)); a("s_cbranch_scc1 L_QOK")
        a("ds_read_b32 v%d, v3 offset:%d" % (vA, L_QF)); a("s_waitcnt lgkmcnt(0)")
        a("v_readfirstlane_b32 s12, v%d" % vA); a("s_cmp_lg_u32 s12, 0"); a("s_cbranch_scc1 L_QOK")
        a("s_sleep 2"); a("s_branch L_QWAIT")
    else:
        a("s_barrier")
    if cfg.sprio: a("s_setprio 0")
    a("L_QOK:")
    stamp(3)
    a("ds_read_b128 %s, v%d offset:%d" % (V(vQ, 4), vT, L_Q))
    a("s_waitcnt lgkmcnt(0)")
    def process(r, nk, nv, refill=False):
        if refill and cfg.dyn: grab()
        a("s_waitcnt vmcnt(%d)" % nk)
        for i in range(4):
            for j in range(4):
                a("v_dot2_f32_bf16 v%d, v%d, v%d, %s" % (vS + j, buf(r, 0, j) + i, vQ + i, "0" if i == 0 else "v%d" % (vS + j)))
        a("v_add_f32_dpp v%d, v%d, v%d row_ror:8 row_mask:0xf bank_mask:0x3" % (vA, vS + 0, vS + 0))
        a("v_add_f32_dpp v%d, v%d, v%d row_ror:8 row_mask:0xf bank_mask:0x3" % (vB, vS + 1, vS + 1))
        a("v_add_f32_dpp v%d, v%d, v%d row_ror:8 row_mask:0xf bank_mask:0xc" % (vA, vS + 2, vS + 2))
        a("v_add_f32_dpp v%d, v%d, v%d row_ror:8 row_mask:0xf bank_mask:0xc" % (vB, vS + 3, vS + 3))
        a("v_add_f32_dpp v%d, v%d, v%d row_half_mirror row_mask:0xf bank_mask:0x5" % (vC, vA, vA))
        a("v_add_f32_dpp v%d, v%d, v%d row_half_mirror row_mask:0xf bank_mask:0xa" % (vC, vB, vB))
        a("v_add_f32_dpp v%d, v%d, v%d quad_perm:[1,0,3,2] %s" % (vC, vC, vC, DPPF))
        a("v_add_f32_dpp v%d, v%d, v%d quad_perm:[2,3,0,1] %s" % (vC, vC, vC, DPPF))
        a("v_cvt_pk_bf16_f32 v%d, v%d, v%d" % (vC, vC, vC)); a("v_and_b32 v%d, s10, v%d" % (vC, vC))
        a("v_mul_f32 v%d, s8, v%d" % (vC, vC))
        a("v_cvt_pk_bf16_f32 v%d, v%d, v%d" % (vC, vC, vC)); a("v_and_b32 v%d, s10, v%d" % (vC, vC))
        a("v_max_f32_dpp v%d, v%d, v%d row_ror:4 %s" % (vA, vC, vC, DPPF))
        a("v_max_f32_dpp v%d, v%d, v%d row_ror:8 %s" % (vA, vA, vA, DPPF))
        a("v_max_f32 v%d, v%d, v%d" % (vMn, vM, vA))
        a("v_sub_f32 v%d, v%d, v%d" % (vAl, vM, vMn)); a("v_sub_f32 v%d, v%d, v%d" % (vP, vC, vMn))
        a("v_mul_f32 v%d, s9, v%d" % (vAl, vAl)); a("v_mul_f32 v%d, s9, v%d" % (vP, vP))
        a("v_exp_f32 v%d, v%d" % (vAl, vAl)); a("v_exp_f32 v%d, v%d" % (vP, vP))
        a("v_mov_b32 v%d, v%d" % (vM, vMn))
        a("v_fma_f32 v%d, v%d, v%d, v%d" % (vL, vL, vAl, vP))
        for i in range(8): a("v_mul_f32 v%d, v%d, v%d" % (vAcc + i, vAcc + i, vAl))
        a("s_waitcnt vmcnt(%d)" % nv)
        for j in range(4):
            for i in range(4):
                src = buf(r, 1, j) + i
                a("v_lshlrev_b32 v%d, 16, v%d" % (vU + 2 * i, src)); a("v_and_b32 v%d, s10, v%d" % (vU + 2 * i + 1, src))
            for k in range(8):
                a("v_fmac_f32_dpp v%d, v%d, v%d row_newbcast:%d %s" % (vAcc + k, vP, vU + k, 4 * j, DPPF))
        if cfg.timeline:
            a("s_memrealtime s[98:99]"); a("s_and_b32 m0, s14, 63"); a("s_add_u32 s14, s14, 1"); a("s_waitcnt lgkmcnt(0)")
            a("v_writelane_b32 v35, s98, m0")
    XA = 0
    out = [8] * cfg.NP
    for t in range(cfg.NP):
        n_after = sum(out[1:])
        process(t, n_after + 4, n_after, refill=(t < cfg.R and cfg.nact == 8))
        out.pop(0)
        if t < cfg.R:
            if cfg.nact < 8:
                l1, l2 = a.newlabel("L_act"), a.newlabel("L_actd")
                a("s_cmp_lt_u32 s3, %d" % cfg.nact); a("s_cbranch_scc1 %s" % l1)
                a("s_mov_b32 s7, 0x%x" % OOB); a("s_mov_b32 s%d, 0" % (52 + t)); issue_grp(t, 0); issue_grp(t, 1); a("s_branch %s" % l2)
                a.label(l1); grab(); issue(t); a.label(l2)
            else:
                issue(t)
            out.append(8 + XA)
    assert len(out) == cfg.R
    nloop = (32 - cfg.NP) // cfg.R
    assert nloop * cfg.R == 32 - cfg.NP
    a("s_mov_b32 s11, 0")
    a("L_SLOOP:")
    for r in range(cfg.R):
        if cfg.dyn: a("s_cmp_eq_u32 s%d, 0" % (52 + r)); a("s_cbranch_scc1 L_SDONE")
        process(r, (8 + XA) * (cfg.R - 1) + 4, (8 + XA) * (cfg.R - 1), refill=True)
        issue(r)
    if cfg.dyn: a("s_branch L_SLOOP")
    else: a("s_add_u32 s11, s11, 1"); a("s_cmp_lt_u32 s11, %d" % nloop); a("s_cbranch_scc1 L_SLOOP")
    a("L_SDONE:")
    stamp(4)
    a("v_mov_b32 v%d, v%d" % (vA, vM)); a("v_mov_b32 v%d, v%d" % (vB, vM))
    a("v_permlane16_swap_b32 v%d, v%d" % (vA, vB)); a("v_max_f32 v%d, v%d, v%d" % (vA, vA, vB))
    a("v_mov_b32 v%d, v%d" % (vB, vA))
    a("v_permlane32_swap_b32 v%d, v%d" % (vA, vB)); a("v_max_f32 v%d, v%d, v%d" % (vMn, vA, vB))
    a("v_sub_f32 v%d, v%d, v%d" % (vAl, vM, vMn)); a("v_mul_f32 v%d, s9, v%d" % (vAl, vAl)); a("v_exp_f32 v%d, v%d" % (vAl, vAl))
    a("v_mul_f32 v%d, v%d, v%d" % (vL, vL, vAl))
    for i in range(8): a("v_mul_f32 v%d, v%d, v%d" % (vAcc + i, vAcc + i, vAl))
    a("v_add_f32_dpp v%d, v%d, v%d row_ror:4 %s" % (vL, vL, vL, DPPF))
    a("v_add_f32_dpp v%d, v%d, v%d row_ror:8 %s" % (vL, vL, vL, DPPF))
    a("v_mov_b32 v%d, v%d" % (vB, vL)); a("v_permlane16_swap_b32 v%d, v%d" % (vL, vB)); a("v_add_f32 v%d, v%d, v%d" % (vL, vL, vB))
    a("v_mov_b32 v%d, v%d" % (vB, vL)); a("v_permlane32_swap_b32 v%d, v%d" % (vL, vB)); a("v_add_f32 v%d, v%d, v%d" % (vL, vL, vB))
    for p in range(4):
        a("v_permlane32_swap_b32 v%d, v%d" % (vAcc + 2 * p, vAcc + 2 * p + 1))
    for p in range(4):
        a("v_add_f32 v%d, v%d, v%d" % (vAcc + 2 * p, vAcc + 2 * p, vAcc + 2 * p + 1))
    a("v_permlane16_swap_b32 v%d, v%d" % (vAcc + 0, vAcc + 2)); a("v_permlane16_swap_b32 v%d, v%d" % (vAcc + 4, vAcc + 6))
    a("v_add_f32 v%d, v%d, v%d" % (vAcc + 0, vAcc + 0, vAcc + 2)); a("v_add_f32 v%d, v%d, v%d" % (vAcc + 4, vAcc + 4, vAcc + 6))
    a("v_lshrrev_b32 v%d, 4, v%d" % (vA, vLane))
    a("v_and_b32 v%d, 1, v%d" % (vB, vA)); a("v_lshlrev_b32 v%d, 1, v%d" % (vB, vB))
    a("v_lshrrev_b32 v%d, 1, v%d" % (vA, vA)); a("v_or_b32 v%d, v%d, v%d" % (vA, vA, vB))
    a("v_and_b32 v%d, 15, v%d" % (vB, vLane)); a("v_lshl_add_u32 v%d, v%d, 3, v%d" % (vA, vB, vA))
    a("v_lshlrev_b32 v%d, 2, v%d" % (vA, vA))
    a("s_lshl_b32 s12, s3, 9"); a("v_add_u32 v%d, s12, v%d" % (vA, vA))
    a("ds_write_b32 v%d, v%d offset:%d" % (vA, vAcc + 0, L_PART))
    a("ds_write_b32 v%d, v%d offset:%d" % (vA, vAcc + 4, L_PART + 16))
    a("v_mov_b32 v%d, v%d" % (vS, vMn)); a("v_mov_b32 v%d, v%d" % (vS + 1, vL))
    a("s_lshl_b32 s12, s3, 3"); a("v_mov_b32 v%d, s12" % vB)
    a("ds_write_b64 v%d, %s offset:%d" % (vB, V(vS, 2), L_PML))
    a("s_waitcnt lgkmcnt(0)")
    stamp(5)
    stamps_flush_S = True
    if cfg.stamps:
        srd(44, 42, 43, WS_SIZE)
        if cfg.timeline:
            a("s_lshl_b32 s12, s2, 3"); a("s_add_u32 s12, s12, s3"); a("s_lshl_b32 s12, s12, 8"); a("s_add_u32 s12, s12, %d" % WS_TL)
            a("v_lshlrev_b32 v2, 2, v%d" % vLane)
            a("buffer_store_dword v35, v2, %s, s12 offen" % S4(44))
        stamps_flush("s3", S4(44))
    a("s_endpgm")

    a("L_CW:")
    gen_control(a, cfg, stamp, stamps_flush, srd, S4, V, DPPF, bf16_round, wave_allreduce_add)
    a("L_END:")
    a("s_endpgm")
    return a


def gen_control(a, cfg, stamp, stamps_flush, srd, S4, V, DPPF, bf16_round, wave_allreduce_add):
    sSig, sHead, sNon = 4, 5, 6
    WS, DBG, W1, W2, XS = 44, 48, 52, 56, 60
    vLane, vZero, vG16, vTR32, vTR64, vOwnB, vOwn, vX, vActW, vActR, vGa = 1, 2, 3, 4, 5, 6, 7, 8, 12, 13, 14
    wf = cfg.wflags
    OOBS = "0x%x" % OOB
    def oob_unless(dst, src, cond):
        a("v_mov_b32 v35, %s" % OOBS); a("v_cndmask_b32 v%d, v35, v%d, %s" % (dst, src, cond))
    a("s_sub_u32 s3, s3, 8")
    if cfg.cprio: a("s_setprio %d" % cfg.cprio)
    a("s_and_b32 s7, s2, 7"); a("s_lshr_b32 s5, s2, 3")
    a("s_lshr_b32 s8, s5, 2"); a("s_lshl_b32 s8, s8, 3"); a("s_add_u32 s8, s8, s7"); a("s_lshl_b32 s8, s8, 2")
    a("s_and_b32 s9, s5, 3"); a("s_add_u32 s%d, s8, s9" % sSig)
    a("v_mov_b32 v%d, 0" % vZero)
    a("v_lshrrev_b32 v%d, 4, v%d" % (vG16, vLane))
    a("v_and_b32 v32, 15, v%d" % vLane); a("v_lshrrev_b32 v33, 2, v32"); a("v_and_b32 v34, 3, v32")
    a("v_lshl_add_u32 v33, v%d, 3, v33" % vG16)
    a("v_lshlrev_b32 v34, 3, v34")
    a("v_lshl_add_u32 v%d, v33, 5, v34" % vTR32); a("v_lshl_add_u32 v%d, v33, 6, v34" % vTR64)
    a("v_lshlrev_b32 v%d, 4, v%d" % (vG16, vG16))
    a("s_mul_i32 s7, s3, 160"); a("v_lshl_add_u32 v%d, v%d, 2, s7" % (vOwn, vLane))
    a("v_cmp_gt_u32 vcc, 40, v%d" % vLane); a("s_mov_b64 s[14:15], vcc")
    a("v_lshlrev_b32 v33, 1, v%d" % vOwn); oob_unless(vOwnB, 33, "s[14:15]")
    a("s_lshl_b32 s7, s3, 9"); a("v_lshl_add_u32 v%d, v%d, 3, s7" % (vActW, vLane)); a("v_add_u32 v%d, s7, v%d" % (vActR, vG16))
    a("v_lshrrev_b32 v33, 4, v%d" % vOwn); a("v_lshlrev_b32 v33, 7, v33"); a("v_and_b32 v34, 15, v%d" % vOwn); a("v_lshl_add_u32 v33, v34, 2, v33")
    oob_unless(vGa, 33, "s[14:15]")
    a("s_mov_b32 s13, 0xffff0000")
    a("s_waitcnt lgkmcnt(0)")
    srd(WS, 42, 43, WS_SIZE); srd(DBG, 40, 41, 256); srd(W1, 36, 37, 640 * 7680); srd(W2, 22, 23, 640 * 8192)
    vW, vCc, vXa, vXo = 16, 18, 20, 26
    a("buffer_load_dword v%d, v%d, %s, 0 offen sc1" % (vW, vZero, S4(WS)))
    srd(XS, 34, 35, 1280)
    a("buffer_load_dwordx2 %s, v%d, %s, 0 offen" % (V(vCc, 2), vOwnB, S4(XS)))
    a("v_lshrrev_b32 v32, 1, v%d" % vLane); a("v_and_b32 v33, 1, v%d" % vLane); a("v_lshlrev_b32 v33, 4, v33")
    a("s_mov_b32 s7, 7680"); a("v_mul_lo_u32 v28, v32, s7"); a("v_add_u32 v28, v28, v33")
    a("v_lshl_add_u32 v29, v32, 13, v33")
    a("s_mul_i32 s7, s3, %d" % (160 * 7680)); a("s_lshl_b32 s8, s%d, 5" % sSig); a("s_add_u32 s7, s7, s8")
    a("s_cmp_lt_u32 s%d, 240" % sSig); a("s_cselect_b32 s7, s7, %s" % OOBS)
    a("s_mul_i32 s9, s3, %d" % WPW)
    for kb in range(5):
        a("s_add_u32 m0, s9, %d" % (L_WM + kb * 1024))
        a("buffer_load_dwordx4 v28, %s, s7 offen %s lds" % (S4(W1), wf))
        if kb < 4: a("s_add_u32 s7, s7, %d" % (32 * 7680))
    srd(XS, 16, 17, 1280)
    a("v_lshlrev_b32 v30, 2, v%d" % vLane)
    for i in range(5): a("buffer_load_dword v%d, v30, %s, 0 offen offset:%d" % (vXa + i, S4(XS), 256 * i))
    a("buffer_load_dwordx2 %s, v%d, %s, 0 offen" % (V(vXo, 2), vOwnB, S4(XS)))
    a("s_mul_i32 s7, s3, %d" % (160 * 8192)); a("s_add_u32 s7, s7, s8")
    for kb in range(5):
        a("s_add_u32 m0, s9, %d" % (L_WQ + kb * 1024))
        a("buffer_load_dwordx4 v29, %s, s7 offen %s lds" % (S4(W2), wf))
        if kb < 4: a("s_add_u32 s7, s7, %d" % (32 * 8192))
    a("s_and_b32 s7, s2, 7"); a("s_lshr_b32 s8, s2, 6")
    a("s_add_u32 s9, s7, s%d" % sHead); a("s_and_b32 s9, s9, 7")
    a("s_mov_b32 s10, 3"); a("s_mov_b32 s11, 0"); a("s_mov_b32 s12, 0")
    lab_m, lab_f, lab_d = a.newlabel("L_rm"), a.newlabel("L_rf"), a.newlabel("L_rd")
    a("s_cmp_ge_u32 s9, 5"); a("s_cbranch_scc1 %s" % lab_m)
    a("s_mov_b32 s11, s7"); a("s_mul_i32 s12, s8, 5"); a("s_add_u32 s12, s12, s9")
    a("s_mov_b32 s10, 0"); a("s_branch %s" % lab_d)
    a.label(lab_m)
    a("s_lshl_b32 s7, s7, 2"); a("s_add_u32 s7, s7, s8")
    a("s_cmp_eq_u32 s9, 7"); a("s_cbranch_scc1 %s" % lab_f)
    a("s_cmp_ge_u32 s7, 27"); a("s_cbranch_scc1 %s" % lab_d)
    a("s_lshl_b32 s7, s7, 1"); a("s_sub_u32 s9, s9, 5"); a("s_add_u32 s11, s7, s9")
    a("s_mov_b32 s10, 1"); a("s_branch %s" % lab_d)
    a.label(lab_f)
    a("s_cmp_ge_u32 s7, 20"); a("s_cbranch_scc1 %s" % lab_d)
    a("s_mov_b32 s11, s7"); a("s_mov_b32 s10, 2")
    a.label(lab_d)
    for i in range(4): a("v_mov_b32 v%d, -1" % (36 + i))
    a("v_lshlrev_b32 v30, 4, v%d" % vLane)
    a("s_lshl_b32 s7, s2, 10"); a("s_add_u32 s7, s7, %d" % WS_REC)
    a("s_mul_i32 s9, s11, 2560"); a("s_lshl_b32 s8, s12, 7"); a("s_add_u32 s9, s9, s8"); a("s_add_u32 s9, s9, %d" % WS_Y1)
    a("s_cmp_eq_u32 s3, 1"); a("s_cselect_b32 s7, s9, s7")
    a("s_cmp_eq_u32 s10, 0"); a("s_cselect_b32 s9, 8, 0")
    a("s_cmp_eq_u32 s3, 1"); a("s_cselect_b32 s8, s9, 33")
    a("s_cmp_ge_u32 s3, 2"); a("s_cselect_b32 s8, 0, s8")
    a("v_cmp_gt_u32 vcc, s8, v%d" % vLane); oob_unless(31, 30, "vcc")
    a("buffer_store_dwordx4 v[36:39], v31, %s, s7 offen sc1" % S4(WS))
    a("s_mul_i32 s7, s11, 2560"); a("s_mul_i32 s8, s3, 640"); a("s_add_u32 s7, s7, s8"); a("s_add_u32 s7, s7, %d" % WS_Y2)
    a("s_cmp_eq_u32 s10, 1"); a("s_cselect_b32 s8, 40, 0")
    a("v_cmp_gt_u32 vcc, s8, v%d" % vLane); oob_unless(31, 30, "vcc")
    a("buffer_store_dwordx4 v[36:39], v31, %s, s7 offen sc1" % S4(WS))
    a("s_and_b32 s7, s2, 7"); a("s_cmp_eq_u32 s7, 0"); a("s_cselect_b32 s8, %d, 0" % cfg.pshard); a("s_cmp_eq_u32 s3, 2"); a("s_cselect_b32 s8, s8, 0")
    a("s_mul_i32 s7, s%d, %d" % (sHead, cfg.pshard * cfg.pstride)); a("s_add_u32 s7, s7, %d" % WS_POOL)
    a("s_mov_b32 s9, %d" % cfg.pstride); a("v_mul_lo_u32 v31, v%d, s9" % vLane)
    a("v_cmp_gt_u32 vcc, s8, v%d" % vLane); oob_unless(31, 31, "vcc")
    a("buffer_store_dword v%d, v31, %s, s7 offen sc1" % (vZero, S4(WS)))
    a("s_lshl_b32 s7, s3, 10"); a("v_add_u32 v31, s7, v30")
    a("ds_write_b128 v31, v[36:39] offset:%d" % L_X)
    a("v_and_b32 v31, 15, v%d" % vLane); a("v_lshlrev_b32 v31, 4, v31"); a("s_lshl_b32 s7, s3, 8"); a("v_add_u32 v31, s7, v31")
    a("ds_write_b128 v31, v[36:39] offset:%d" % (L_X + 4096))
    if cfg.pool and cfg.pmode == "M":
        a("s_lshl_b32 s7, s3, 11"); a("v_add_u32 v31, s7, v30")
        a("ds_write_b128 v31, v[36:39] offset:%d" % L_TAB); a("ds_write_b128 v31, v[36:39] offset:%d" % (L_TAB + 1024))
    a("v_mov_b32 v31, %d" % (cfg.NP * 8)); a("ds_write_b32 v%d, v31 offset:%d" % (vZero, L_CTR))
    a("ds_write_b32 v%d, v%d offset:%d" % (vZero, vZero, L_QF)); a("ds_write_b32 v%d, v%d offset:%d" % (vZero, vZero, L_PF)); a("ds_write_b32 v%d, v%d offset:%d" % (vZero, vZero, L_EX))
    a("s_waitcnt lgkmcnt(0)")
    if cfg.b0wait: a("s_waitcnt vmcnt(3)")
    stamp(1)
    a("s_barrier")
    NV = 21
    a("s_waitcnt vmcnt(%d)" % (NV - 2))
    a("v_readfirstlane_b32 s%d, v%d" % (sNon, vW))
    a("s_mul_i32 s%d, s%d, 0x9E3779B1" % (sNon, sNon)); a("s_add_u32 s%d, s%d, 0x7F4A7C15" % (sNon, sNon))
    def unpack2(dst, src):
        a("v_lshlrev_b32 v%d, 16, v%d" % (dst, src)); a("v_and_b32 v%d, s13, v%d" % (dst + 1, src))
    unpack2(28, vCc); unpack2(30, vCc + 1)
    for i in range(4): a("v_mul_f32 v%d, %s, v%d" % (32 + i, f32(-LOG2E), 28 + i))
    for i in range(4): a("v_exp_f32 v%d, v%d" % (32 + i, 32 + i))
    for i in range(4): a("v_add_f32 v%d, 1.0, v%d" % (32 + i, 32 + i))
    for i in range(4): a("v_rcp_f32 v%d, v%d" % (32 + i, 32 + i))
    for i in range(4): a("v_mul_f32 v%d, v%d, v%d" % (28 + i, 28 + i, 32 + i))
    a("v_cvt_pk_bf16_f32 v28, v28, v29"); a("v_cvt_pk_bf16_f32 v29, v30, v31")
    a("ds_write_b64 v%d, v[28:29] offset:%d" % (vActW, L_ACT))
    vB = 40
    for kb in range(5): a("ds_read_b128 %s, v%d offset:%d" % (V(vB + 4 * kb, 4), vActR, L_ACT + kb * 64))
    stamp(2)
    vWf = 72
    a("s_mul_i32 s7, s3, %d" % WPW); a("v_add_u32 v32, s7, v%d" % vTR32)
    a("s_waitcnt vmcnt(%d)" % (NV - 7))
    for kb in range(5):
        a("ds_read_b64_tr_b16 %s, v32 offset:%d" % (V(vWf + 4 * kb, 2), L_WM + kb * 1024))
        a("ds_read_b64_tr_b16 %s, v32 offset:%d" % (V(vWf + 4 * kb + 2, 2), L_WM + kb * 1024 + 128))
    vAcc = 36
    a("s_waitcnt lgkmcnt(0)")
    def mfma(acc, A, B, first):
        a("v_mfma_f32_16x16x32_bf16 %s, %s, %s, %s" % (V(acc, 4), V(A, 4), V(B, 4), "0" if first else V(acc, 4)))
    for kb in range(5): mfma(vAcc, vWf + 4 * kb, vB + 4 * kb, kb == 0)
    def exec4(on):
        if on: a("s_mov_b32 exec_lo, 0x00010001"); a("s_mov_b32 exec_hi, 0x00010001")
        else: a("s_mov_b64 exec, -1")
    def xwrite(base, per_wave, regs):
        a("s_mul_i32 s7, s3, %d" % per_wave); a("v_add_u32 v33, s7, v%d" % vG16)
        exec4(True)
        for k, r in enumerate(regs): a("ds_write_b128 v33, %s offset:%d" % (V(r, 4), base + 64 * k))
        exec4(False)
    def spin_begin(name):
        a("s_mov_b32 s9, 0"); a.label(name)
        a("s_add_u32 s9, s9, 1"); a("s_cmp_gt_u32 s9, %d" % cfg.spin_limit); a("s_cbranch_scc1 L_BAIL")
    def umax(regs, dst):
        regs = list(regs)
        a("v_max_u32 v%d, v%d, v%d" % (dst, regs[0], regs[1])); regs = regs[2:]
        while len(regs) >= 2:
            a("v_max3_u32 v%d, v%d, v%d, v%d" % (dst, dst, regs[0], regs[1])); regs = regs[2:]
        if regs: a("v_max_u32 v%d, v%d, v%d" % (dst, dst, regs[0]))
    def spin_until_no_sentinel(name, regs, t):
        umax(regs, t); a("v_cmp_eq_u32 vcc, -1, v%d" % t); a("s_cbranch_vccnz %s" % name)
    def xsum(name, base, stride, nl, dst):
        a("v_and_b32 v33, %d, v%d" % (nl - 1, vLane)); a("v_lshlrev_b32 v33, 4, v33")
        spin_begin(name)
        for w in range(4): a("ds_read_b128 %s, v33 offset:%d" % (V(dst + 4 * w, 4), base + stride * w))
        a("s_waitcnt lgkmcnt(0)")
        spin_until_no_sentinel(name, range(dst, dst + 16), 34)
        for i in range(4):
            a("v_add_f32 v%d, v%d, v%d" % (dst + i, dst + i, dst + 4 + i)); a("v_add_f32 v%d, v%d, v%d" % (dst + 8 + i, dst + 8 + i, dst + 12 + i))
        for i in range(4): a("v_add_f32 v%d, v%d, v%d" % (dst + i, dst + i, dst + 8 + i))
    def publish_granules(src, slot_base, nlanes_code):
        a("v_cvt_pk_bf16_f32 v%d, v%d, v%d" % (src, src, src + 1)); a("v_cvt_pk_bf16_f32 v%d, v%d, v%d" % (src + 2, src + 2, src + 3))
        a("v_mov_b32 v%d, s%d" % (src + 1, sNon)); a("v_mov_b32 v%d, s%d" % (src + 3, sNon))
        a("s_lshl_b32 s7, s%d, 7" % sSig); a("s_add_u32 s7, s7, %d" % slot_base)
        nlanes_code()
        a("v_lshlrev_b32 v33, 4, v%d" % vLane); a("v_cmp_gt_u32 vcc, s8, v%d" % vLane); oob_unless(33, 33, "vcc")
        a("buffer_store_dwordx4 %s, v33, %s, s7 offen sc1" % (V(src, 4), S4(WS)))
    xwrite(L_X1, 64, [vAcc])
    lab = a.newlabel("L_nm")
    a("s_cmp_lg_u32 s3, 0"); a("s_cbranch_scc1 %s" % lab)
    xsum(a.newlabel("L_sx1"), L_X1, 64, 4, 92)
    def okm(): a("s_cmp_lt_u32 s%d, 240" % sSig); a("s_cselect_b32 s8, 4, 0")
    publish_granules(92, WS_MOD, okm)
    a.label(lab)
    stamp(3)
    a("s_waitcnt vmcnt(8)")
    unpack2(vX, vXo); unpack2(vX + 2, vXo + 1)
    vE = 60
    for i in range(5): unpack2(vE + 2 * i, vXa + i)
    def ln_stats(vals, nmask_last, vmean, vden, t):
        first = True
        for k, x in enumerate(vals):
            src = x
            if nmask_last and k >= len(vals) - nmask_last[0]:
                a("v_cndmask_b32 v%d, 0, v%d, %s" % (t, x, nmask_last[1])); src = t
            if first: a("v_mov_b32 v%d, v%d" % (vmean, src)); first = False
            else: a("v_add_f32 v%d, v%d, v%d" % (vmean, vmean, src))
        wave_allreduce_add("v%d" % vmean, "v%d" % t)
        a("v_mul_f32 v%d, %s, v%d" % (vmean, f32(1.0 / 640), vmean))
        first = True
        for k, x in enumerate(vals):
            a("v_sub_f32 v%d, v%d, v%d" % (t, x, vmean))
            if nmask_last and k >= len(vals) - nmask_last[0]:
                a("v_cndmask_b32 v%d, 0, v%d, %s" % (t, t, nmask_last[1]))
            if first: a("v_mul_f32 v%d, v%d, v%d" % (vden, t, t)); first = False
            else: a("v_fma_f32 v%d, v%d, v%d, v%d" % (vden, t, t, vden))
        wave_allreduce_add("v%d" % vden, "v%d" % t)
        a("v_mul_f32 v%d, %s, v%d" % (vden, f32(1.0 / 640), vden))
        bf16_round("v%d" % vden, "v%d" % vden)
        a("v_add_f32 v%d, %s, v%d" % (vden, f32(1e-5), vden)); bf16_round("v%d" % vden, "v%d" % vden)
        a("v_sqrt_f32 v%d, v%d" % (vden, vden)); bf16_round("v%d" % vden, "v%d" % vden)
        bf16_round("v%d" % vmean, "v%d" % vmean)
    def ln_apply(dst, src, vmean, vden, t):
        a("v_rcp_f32 v%d, v%d" % (t, vden))
        for i in range(4):
            a("v_sub_f32 v%d, v%d, v%d" % (dst + i, src + i, vmean)); bf16_round("v%d" % (dst + i), "v%d" % (dst + i))
            a("v_mul_f32 v%d, v%d, v%d" % (t + 1, dst + i, t))
            a("v_fma_f32 v%d, -v%d, v%d, v%d" % (t + 2, t + 1, vden, dst + i))
            a("v_fma_f32 v%d, v%d, v%d, v%d" % (dst + i, t + 2, t, t + 1))
            bf16_round("v%d" % (dst + i), "v%d" % (dst + i))
    vLN = 24
    ln_stats([vE + i for i in range(10)], None, 28, 29, 32)
    ln_apply(vLN, vX, 28, 29, 32)
    a("s_mul_i32 s7, s3, %d" % WPW); a("v_add_u32 v32, s7, v%d" % vTR32)
    a("s_waitcnt vmcnt(3)")
    for kb in range(5):
        a("ds_read_b64_tr_b16 %s, v32 offset:%d" % (V(vWf + 4 * kb, 2), L_WQ + kb * 1024))
        a("ds_read_b64_tr_b16 %s, v32 offset:%d" % (V(vWf + 4 * kb + 2, 2), L_WQ + kb * 1024 + 128))
    stamp(4)
    def pipelined_poll(name, D, nloads, issue_fn, check_fn, take_fn):
        done = a.newlabel(name + "_done")
        oks = [a.newlabel(name + "_ok") for _ in range(D)]
        for k in range(D - 1):
            issue_fn(k)
            if cfg.psleep: a("s_sleep %d" % cfg.psleep)
        spin_begin(name)
        for k in range(D):
            issue_fn((k + D - 1) % D)
            a("s_waitcnt vmcnt(%d)" % (nloads * (D - 1)))
            check_fn(k)
            a("s_cbranch_vccz %s" % oks[k])
        a("s_branch %s" % name)
        for k in range(D):
            a.label(oks[k]); take_fn(k)
            if k < D - 1: a("s_branch %s" % done)
        a.label(done)
    def poll_mod(name, specs, vaddr, mask, D=1, scratch=None):
        n = len(specs)
        def reg(k, i): return specs[i][0] if D == 1 else scratch + (k * n + i) * 4
        def issue_fn(k):
            for i, (dst, col) in enumerate(specs):
                a("s_mov_b32 s7, %d" % (WS_MOD + (col >> 4) * 128))
                a("buffer_load_dwordx4 %s, v%d, %s, s7 offen sc1" % (V(reg(k, i), 4), vaddr, S4(WS)))
        def check_fn(k):
            first = True
            for i in range(n):
                for t in (1, 3):
                    if first: a("v_xor_b32 v34, s%d, v%d" % (sNon, reg(k, i) + t)); first = False
                    else: a("v_xor_b32 v35, s%d, v%d" % (sNon, reg(k, i) + t)); a("v_or_b32 v34, v34, v35")
            a("v_cmp_ne_u32 vcc, 0, v34"); a("s_and_b64 vcc, vcc, %s" % mask)
        def take_fn(k):
            if D == 1: return
            for i, (dst, col) in enumerate(specs):
                for t in (0, 2): a("v_mov_b32 v%d, v%d" % (dst + t, reg(k, i) + t))
        pipelined_poll(name, D, n, issue_fn, check_fn, take_fn)
    vSa, vCa = 92, 96
    poll_mod(a.newlabel("L_pm"), [(vSa, 0), (vCa, 640)], vGa, "s[14:15]", D=cfg.pd_mod, scratch=112)
    stamp(5)
    def modulate(dst, ln, vca, vsa, t):
        unpack2(t, vca); unpack2(t + 2, vca + 2); unpack2(t + 4, vsa); unpack2(t + 6, vsa + 2)
        for i in range(4):
            a("v_add_f32 v%d, 1.0, v%d" % (t + i, t + i)); bf16_round("v%d" % (t + i), "v%d" % (t + i))
            a("v_mul_f32 v%d, v%d, v%d" % (dst + i, ln + i, t + i)); bf16_round("v%d" % (dst + i), "v%d" % (dst + i))
            a("v_add_f32 v%d, v%d, v%d" % (dst + i, dst + i, t + 4 + i))
    modulate(108, vLN, vCa, vSa, 100)
    a("v_cvt_pk_bf16_f32 v28, v108, v109"); a("v_cvt_pk_bf16_f32 v29, v110, v111")
    a("ds_write_b64 v%d, v[28:29] offset:%d" % (vActW, L_ACT))
    for kb in range(5): a("ds_read_b128 %s, v%d offset:%d" % (V(vB + 4 * kb, 4), vActR, L_ACT + kb * 64))
    a("s_waitcnt lgkmcnt(0)")
    for kb in range(5): mfma(vAcc, vWf + 4 * kb, vB + 4 * kb, kb == 0)
    xwrite(L_X2, 64, [vAcc])
    lab = a.newlabel("L_nq")
    a("s_cmp_lg_u32 s3, 0"); a("s_cbranch_scc1 %s" % lab)
    xsum(a.newlabel("L_sx2"), L_X2, 64, 4, 92)
    def okq(): a("s_mov_b32 s8, 4")
    publish_granules(92, WS_Q, okq)
    a("v_mov_b32 v34, 1"); a("v_cmp_eq_u32 vcc, 0, v%d" % vLane); oob_unless(33, vZero, "vcc")
    a("buffer_atomic_add v34, v33, %s, 0 offen" % S4(DBG))
    stamp(6)
    a("v_lshrrev_b32 v33, 3, v%d" % vLane); a("v_lshlrev_b32 v33, 7, v33"); a("v_and_b32 v34, 7, v%d" % vLane); a("v_lshl_add_u32 v33, v34, 3, v33")
    a("s_lshl_b32 s8, s%d, 10" % sHead); a("s_add_u32 s8, s8, %d" % WS_Q)
    a("v_mov_b32 v31, v33")
    pipelined_poll(a.newlabel("L_pq"), cfg.pd_q, 1,
                   lambda k: a("buffer_load_dwordx2 %s, v31, %s, s8 offen sc1" % (V(144 + 2 * k, 2), S4(WS))),
                   lambda k: a("v_cmp_ne_u32 vcc, s%d, v%d" % (sNon, 145 + 2 * k)),
                   lambda k: a("v_mov_b32 v92, v%d" % (144 + 2 * k)))
    a("v_lshlrev_b32 v33, 2, v%d" % vLane)
    a("ds_write_b32 v33, v92 offset:%d" % L_Q)
    a("s_waitcnt lgkmcnt(0)")
    a("v_mov_b32 v33, 1"); a("ds_write_b32 v%d, v33 offset:%d" % (vZero, L_QF))
    a.label(lab)
    stamp(7)
    if cfg.qmode == "barrier": a("s_barrier")

    MGR = bool(cfg.pool) and cfg.pmode == "M"
    lab = a.newlabel("L_stay")
    a("s_cmp_eq_u32 s3, 0"); a("s_cbranch_scc1 %s" % lab)
    if MGR: a("s_cmp_eq_u32 s3, 3"); a("s_cbranch_scc1 %s" % lab)
    a("s_cmp_eq_u32 s10, 3"); a("s_cbranch_scc1 L_CEND")
    a("s_cmp_lg_u32 s10, 2"); a("s_cbranch_scc1 %s" % lab)
    a("s_cmp_ge_u32 s3, 2"); a("s_cbranch_scc1 L_CEND")
    a.label(lab)
    nm = a.newlabel("L_pc")
    spin_begin(nm)
    a("buffer_load_dword v33, v%d, %s, 0 offen sc1" % (vZero, S4(DBG)))
    a("s_waitcnt vmcnt(0)")
    a("v_cmp_gt_u32 vcc, 256, v33"); a("s_cbranch_vccnz %s" % nm)
    a("v_mov_b32 v33, 1"); a("ds_write_b32 v%d, v33 offset:%d" % (vZero, L_PF))
    vF = 40
    vGaG, vSb, vCb = 16, 20, 24
    def dma_wo():
        srd(W1, 24, 25, 4096 * 1280)
        a("v_lshrrev_b32 v33, 2, v%d" % vLane); a("s_mov_b32 s7, 1280"); a("v_mul_lo_u32 v33, v33, s7"); a("v_and_b32 v34, 3, v%d" % vLane); a("v_lshl_add_u32 v33, v34, 4, v33")
        a("s_lshl_b32 s7, s11, 2"); a("s_add_u32 s7, s7, s3"); a("s_mul_i32 s7, s7, %d" % (128 * 1280)); a("s_lshl_b32 s8, s12, 6"); a("s_add_u32 s7, s7, s8")
        a("s_mul_i32 s9, s3, %d" % WPW)
        for i in range(8):
            a("s_add_u32 m0, s9, %d" % (L_TW + i * 1024))
            a("buffer_load_dwordx4 v33, %s, s7 offen %s lds" % (S4(W1), wf))
            if i < 7: a("s_add_u32 s7, s7, %d" % (16 * 1280))
    def frags_wo():
        a("s_mul_i32 s9, s3, %d" % WPW); a("v_add_u32 v32, s9, v%d" % vTR64)
        for cgp in range(2):
            for kb in range(4):
                r = vF + (cgp * 4 + kb) * 4
                a("ds_read_b64_tr_b16 %s, v32 offset:%d" % (V(r, 2), L_TW + kb * 2048 + cgp * 32))
                a("ds_read_b64_tr_b16 %s, v32 offset:%d" % (V(r + 2, 2), L_TW + kb * 2048 + cgp * 32 + 256))
            a("s_waitcnt lgkmcnt(0)")
    def dma_mlp():
        srd(W1, 28, 29, 640 * 3456); srd(W2, 30, 31, 640 * 3456)
        a("v_lshrrev_b32 v33, 2, v%d" % vLane); a("s_mov_b32 s7, 3456"); a("v_mul_lo_u32 v33, v33, s7"); a("v_and_b32 v34, 3, v%d" % vLane); a("v_lshl_add_u32 v33, v34, 4, v33")
        a("s_mul_i32 s7, s3, %d" % (160 * 3456)); a("s_lshl_b32 s8, s11, 6"); a("s_add_u32 s7, s7, s8")
        a("s_mul_i32 s9, s3, %d" % WPW)
        for i in range(10):
            a("s_add_u32 m0, s9, %d" % (L_TW + i * 1024))
            a("buffer_load_dwordx4 v33, %s, s7 offen %s lds" % (S4(W1), wf))
            a("s_add_u32 m0, s9, %d" % (L_TW + 10240 + i * 1024))
            a("buffer_load_dwordx4 v33, %s, s7 offen %s lds" % (S4(W2), wf))
            if i < 9: a("s_add_u32 s7, s7, %d" % (16 * 3456))
        srd(W1, 32, 33, 1728 * 1280)
        a("v_lshrrev_b32 v33, 1, v%d" % vLane); a("s_mov_b32 s7, 1280"); a("v_mul_lo_u32 v33, v33, s7"); a("v_and_b32 v34, 1, v%d" % vLane); a("v_lshl_add_u32 v33, v34, 4, v33")
        a("s_mul_i32 s7, s11, %d" % (32 * 1280)); a("s_mul_i32 s8, s3, 320"); a("s_add_u32 s7, s7, s8")
        for i in range(10):
            a("s_add_u32 m0, s9, %d" % (L_TW + 20480 + i * 1024))
            a("buffer_load_dwordx4 v33, %s, s7 offen %s lds" % (S4(W1), wf))
            if i < 9: a("s_add_u32 s7, s7, 32")
    def frags_mlp():
        a("s_mul_i32 s9, s3, %d" % WPW); a("v_add_u32 v32, s9, v%d" % vTR64); a("v_add_u32 v15, s9, v%d" % vTR32)
        for m in range(2):
            for cgp in range(2):
                for kb in range(5):
                    r = vF + m * 40 + (cgp * 5 + kb) * 4
                    a("ds_read_b64_tr_b16 %s, v32 offset:%d" % (V(r, 2), L_TW + m * 10240 + kb * 2048 + cgp * 32))
                    a("ds_read_b64_tr_b16 %s, v32 offset:%d" % (V(r + 2, 2), L_TW + m * 10240 + kb * 2048 + cgp * 32 + 256))
                a("s_waitcnt lgkmcnt(0)")
    def by_role(f_wo, f_mlp):
        l1, l2 = a.newlabel("L_br"), a.newlabel("L_brd")
        a("s_cmp_lg_u32 s10, 0"); a("s_cbranch_scc1 %s" % l1)
        f_wo(); a("s_branch %s" % l2)
        a.label(l1)
        a("s_cmp_lg_u32 s10, 1"); a("s_cbranch_scc1 %s" % l2)
        f_mlp()
        a.label(l2)
    wm_wo = cfg.wmode_wo or cfg.wmode
    wm_mlp = cfg.wmode_mlp or cfg.wmode
    nop = lambda: None
    l_nm, l_nf = a.newlabel("L_nmlp"), a.newlabel("L_nfin")
    a("s_cmp_lg_u32 s10, 1"); a("s_cbranch_scc1 %s" % l_nm)
    poll_mod(a.newlabel("L_pm2"), [(vGaG, 1280), (vSb, 1920), (vCb, 2560)], vGa, "s[14:15]")
    a.label(l_nm)
    a("s_cmp_lg_u32 s10, 2"); a("s_cbranch_scc1 %s" % l_nf)
    a("s_cmp_ge_u32 s3, 2"); a("s_cbranch_scc1 %s" % l_nf)
    a("s_lshl_b32 s11, s11, 1"); a("s_add_u32 s11, s11, s3")
    a("v_and_b32 v15, 15, v%d" % vLane); a("v_lshrrev_b32 v33, 1, v15"); a("v_lshlrev_b32 v33, 3, v33"); a("s_lshl_b32 s7, s11, 7"); a("v_add_u32 v33, s7, v33")
    nm = a.newlabel("L_pm3")
    spin_begin(nm)
    a("s_mov_b32 s7, %d" % (WS_MOD + (1280 >> 4) * 128)); a("buffer_load_dwordx2 v[16:17], v33, %s, s7 offen sc1" % S4(WS))
    a("s_mov_b32 s7, %d" % (WS_MOD + (3200 >> 4) * 128)); a("buffer_load_dwordx2 v[18:19], v33, %s, s7 offen sc1" % S4(WS))
    a("s_waitcnt vmcnt(0)")
    a("v_xor_b32 v34, s%d, v17" % sNon); a("v_xor_b32 v35, s%d, v19" % sNon); a("v_or_b32 v34, v34, v35")
    a("v_cmp_ne_u32 vcc, 0, v34"); a("s_cbranch_vccnz %s" % nm)
    a("v_and_b32 v34, 1, v15"); a("v_cmp_eq_u32 vcc, 1, v34")
    for r in (16, 18):
        a("v_lshlrev_b32 v34, 16, v%d" % r); a("v_and_b32 v%d, s13, v%d" % (r, r)); a("v_cndmask_b32 v%d, v34, v%d, vcc" % (r, r))
    srd(XS, 16, 17, 1280)
    a("s_lshl_b32 s7, s11, 5"); a("v_lshlrev_b32 v34, 1, v15")
    a("buffer_load_ushort v20, v34, %s, s7 offen" % S4(XS)); a("s_waitcnt vmcnt(0)"); a("v_lshlrev_b32 v20, 16, v20")
    a.label(l_nf)
    if wm_wo == "early" or wm_mlp == "early":
        by_role((lambda: (dma_wo(), a("s_waitcnt vmcnt(0)"), frags_wo())) if wm_wo == "early" else nop,
                (lambda: (dma_mlp(), a("s_waitcnt vmcnt(0)"), frags_mlp())) if wm_mlp == "early" else nop)
    if MGR:
        NSM = cfg.pool; nrem = 256 - NSM; PSZ = 8 * nrem; sh = nrem.bit_length() - 1
        assert nrem & (nrem - 1) == 0 and (PSZ + 128) * 4 <= 8192
        lm_skip, lm_loop, lm_end = a.newlabel("L_mgs"), a.newlabel("L_mgl"), a.newlabel("L_mge")
        a("s_cmp_lg_u32 s3, 3"); a("s_cbranch_scc1 %s" % lm_skip)
        a("s_mul_i32 s7, s%d, %d" % (sHead, cfg.pstride)); a("s_add_u32 s7, s7, %d" % WS_POOL)
        a("s_add_u32 s60, s42, s7"); a("s_addc_u32 s61, s43, 0")
        a("s_mov_b32 s62, 0"); a("s_mov_b32 s63, %d" % PSZ)
        a("s_mov_b32 s9, 0")
        a.label(lm_loop)
        a("s_add_u32 s9, s9, 1"); a("s_cmp_gt_u32 s9, %d" % (cfg.spin_limit * 16)); a("s_cbranch_scc1 L_BAIL")
        a("ds_read_b32 v33, v%d offset:%d" % (vZero, L_CTR)); a("s_waitcnt lgkmcnt(0)")
        a("v_readfirstlane_b32 s7, v33"); a("s_add_u32 s7, s7, %d" % cfg.look); a("s_add_u32 s8, s62, %d" % NSM)
        lm_go = a.newlabel("L_mgg")
        a("s_cmp_gt_u32 s7, s8"); a("s_cbranch_scc1 %s" % lm_go)
        a("s_sleep 3"); a("s_branch %s" % lm_loop)
        a.label(lm_go)
        a("s_lshr_b32 s7, s63, %d" % cfg.gshift); a("s_max_u32 s7, s7, %d" % cfg.gmin); a("s_min_u32 s7, s7, 64")
        a("s_mov_b32 s8, s7"); a("s_atomic_add s8, s[60:61], 0 glc"); a("s_waitcnt lgkmcnt(0)")
        a("v_add_u32 v33, s8, v%d" % vLane)
        a("v_lshrrev_b32 v34, %d, v33" % sh); a("v_add_u32 v34, s%d, v34" % sHead); a("v_and_b32 v34, 7, v34"); a("v_lshlrev_b32 v34, 20, v34")
        a("v_and_b32 v35, %d, v33" % (nrem - 1)); a("v_add_u32 v35, %d, v35" % NSM); a("v_lshl_add_u32 v34, v35, 12, v34")
        a("v_cmp_gt_u32 vcc, %d, v33" % PSZ); a("v_mov_b32 v35, -2"); a("v_cndmask_b32 v34, v35, v34, vcc")
        a("v_add_u32 v35, s62, v%d" % vLane); a("v_lshlrev_b32 v35, 2, v35")
        a("v_cmp_gt_u32 vcc, s7, v%d" % vLane); a("s_and_saveexec_b64 s[100:101], vcc")
        a("ds_write_b32 v35, v34 offset:%d" % L_TAB)
        a("s_mov_b64 exec, -1")
        a("s_add_u32 s62, s62, s7"); a("s_add_u32 s8, s8, s7")
        a("s_cmp_ge_u32 s8, %d" % PSZ); a("s_cbranch_scc1 %s" % lm_end)
        a("s_sub_u32 s63, %d, s8" % PSZ); a("s_mov_b32 s9, 0"); a("s_branch %s" % lm_loop)
        a.label(lm_end)
        a("v_add_u32 v35, s62, v%d" % vLane); a("v_lshlrev_b32 v35, 2, v35"); a("v_mov_b32 v34, -2")
        a("ds_write_b32 v35, v34 offset:%d" % L_TAB)
        a("v_mov_b32 v34, 1"); a("ds_write_b32 v%d, v34 offset:%d" % (vZero, L_EX))
        a("s_cmp_ge_u32 s10, 2"); a("s_cbranch_scc1 L_CEND")
        a.label(lm_skip)
    if wm_wo == "ex" or wm_mlp == "ex":
        nm = a.newlabel("L_trig"); l_nt = a.newlabel("L_ntrig")
        a("s_cmp_ge_u32 s10, 2"); a("s_cbranch_scc1 %s" % l_nt)
        if wm_wo != "ex": a("s_cmp_eq_u32 s10, 0"); a("s_cbranch_scc1 %s" % l_nt)
        if wm_mlp != "ex": a("s_cmp_eq_u32 s10, 1"); a("s_cbranch_scc1 %s" % l_nt)
        a("s_mov_b32 s9, 0")
        a.label(nm)
        a("s_add_u32 s9, s9, 1"); a("s_cmp_gt_u32 s9, %d" % (cfg.spin_limit * 16)); a("s_cbranch_scc1 L_BAIL")
        a("s_sleep 2")
        a("ds_read_b32 v33, v%d offset:%d" % (vZero, L_EX)); a("s_waitcnt lgkmcnt(0)")
        a("v_readfirstlane_b32 s7, v33"); a("s_cmp_eq_u32 s7, 0"); a("s_cbranch_scc1 %s" % nm)
        if cfg.tprio is not None: a("s_setprio %d" % cfg.tprio)
        by_role(dma_wo if wm_wo == "ex" else nop, dma_mlp if wm_mlp == "ex" else nop)
        if cfg.tprio is not None: a("s_setprio %d" % cfg.cprio)
        a.label(l_nt)

    a.label("L_T1")
    stamp(8)
    a("s_barrier")
    stamp(9)
    lab = a.newlabel("L_noT1")
    a("s_cmp_lg_u32 s3, 0"); a("s_cbranch_scc1 %s" % lab)
    oi = [120, 124, 128, 132]
    a("v_and_b32 v33, 7, v%d" % vLane); a("v_lshlrev_b32 v33, 3, v33")
    a("ds_read_b64 v[34:35], v33 offset:%d" % L_PML)
    a("v_and_b32 v33, 31, v%d" % vLane); a("v_lshlrev_b32 v33, 4, v33"); a("v_lshrrev_b32 v32, 5, v%d" % vLane); a("v_lshl_add_u32 v33, v32, 11, v33")
    for i in range(4): a("ds_read_b128 %s, v33 offset:%d" % (V(oi[i], 4), L_PART + i * 512))
    a("s_mov_b32 s8, %s" % f32(LOG2E))
    a("s_waitcnt lgkmcnt(4)")
    def combine8(vMl, oi, tA, tB, tC, normalize):
        a("v_max_f32_dpp v%d, v%d, v%d quad_perm:[1,0,3,2] %s" % (tA, vMl, vMl, DPPF))
        a("v_max_f32_dpp v%d, v%d, v%d quad_perm:[2,3,0,1] %s" % (tA, tA, tA, DPPF))
        a("v_max_f32_dpp v%d, v%d, v%d row_half_mirror %s" % (tA, tA, tA, DPPF))
        a("v_sub_f32 v%d, v%d, v%d" % (tC, vMl, tA)); a("v_mul_f32 v%d, s8, v%d" % (tC, tC)); a("v_exp_f32 v%d, v%d" % (tC, tC))
        a("v_mul_f32 v%d, v%d, v%d" % (tB, tC, vMl + 1))
        a("v_add_f32_dpp v%d, v%d, v%d quad_perm:[1,0,3,2] %s" % (tB, tB, tB, DPPF))
        a("v_add_f32_dpp v%d, v%d, v%d quad_perm:[2,3,0,1] %s" % (tB, tB, tB, DPPF))
        a("v_add_f32_dpp v%d, v%d, v%d row_half_mirror %s" % (tB, tB, tB, DPPF))
        if normalize:
            a("v_rcp_f32 v%d, v%d" % (vMl, tB))
            a("v_mul_f32 v%d, v%d, v%d" % (vMl + 1, tC, vMl))
            a("v_fma_f32 v%d, -v%d, v%d, v%d" % (tA, vMl + 1, tB, tC))
            a("v_fma_f32 v%d, v%d, v%d, v%d" % (tC, tA, vMl, vMl + 1))
        else:
            a("s_waitcnt lgkmcnt(0)")
        for i in range(4):
            a("v_mov_b32_dpp v%d, v%d row_newbcast:%d row_mask:0x3 bank_mask:0xf" % (vMl, tC, i))
            a("v_mov_b32_dpp v%d, v%d row_newbcast:%d row_mask:0xc bank_mask:0xf" % (vMl, tC, i + 4))
            for k in range(4):
                if i == 0: a("v_mul_f32 v%d, v%d, v%d" % (oi[0] + k, oi[0] + k, vMl))
                else: a("v_fma_f32 v%d, v%d, v%d, v%d" % (oi[0] + k, oi[i] + k, vMl, oi[0] + k))
    combine8(34, oi, 36, 37, 38, False)
    for k in range(4): a("v_mov_b32 v%d, v%d" % (oi[1] + k, oi[0] + k))
    for k in range(4): a("v_permlane32_swap_b32 v%d, v%d" % (oi[0] + k, oi[1] + k))
    for k in range(4): a("v_add_f32 v%d, v%d, v%d" % (oi[0] + k, oi[0] + k, oi[1] + k))
    a("v_cmp_gt_u32 vcc, 32, v%d" % vLane)
    a("v_cndmask_b32 v%d, v36, v%d, vcc" % (oi[0], oi[0])); a("v_cndmask_b32 v%d, v37, v%d, vcc" % (oi[0] + 1, oi[0] + 1))
    a("v_lshlrev_b32 v33, 4, v%d" % vLane); a("v_cmp_gt_u32 vcc, 33, v%d" % vLane); oob_unless(33, 33, "vcc")
    a("s_lshl_b32 s7, s2, 10"); a("s_add_u32 s7, s7, %d" % WS_REC)
    a("buffer_store_dwordx4 %s, v33, %s, s7 offen sc1" % (V(oi[0], 4), S4(WS)))
    a.label(lab)
    stamp(10)
    if wm_wo == "b2" or wm_mlp == "b2":
        by_role(dma_wo if wm_wo == "b2" else nop, dma_mlp if wm_mlp == "b2" else nop)
    a("s_cmp_eq_u32 s10, 0"); a("s_cbranch_scc1 L_T2")
    a("s_cmp_eq_u32 s10, 3"); a("s_cbranch_scc1 L_CEND")
    def poll_ml(head_sgpr, name, sleep):
        a("v_and_b32 v33, 7, v%d" % vLane); a("v_lshlrev_b32 v33, 10, v33")
        a("s_lshl_b32 s8, %s, 13" % head_sgpr); a("s_add_u32 s8, s8, %d" % (WS_REC + 512))
        spin_begin(name)
        if sleep: a("s_sleep %d" % sleep)
        a("buffer_load_dwordx2 v[34:35], v33, %s, s8 offen sc1" % S4(WS))
        a("s_waitcnt vmcnt(0)")
        a("v_max_u32 v32, v34, v35"); a("v_cmp_eq_u32 vcc, -1, v32"); a("s_cbranch_vccnz %s" % name)
    poll_ml("s%d" % sHead, a.newlabel("L_gate"), 2)
    a("s_cmp_eq_u32 s10, 1"); a("s_cbranch_scc1 L_T3")
    a("s_branch L_T4")

    a.label("L_T2")
    a("s_lshl_b32 s4, s11, 2"); a("s_add_u32 s4, s4, s3")
    if wm_wo != "early": a("s_waitcnt vmcnt(0)"); frags_wo()
    poll_ml("s4", a.newlabel("L_pml"), 1)
    stamp(11)
    oi = [120, 124, 128, 132]
    a("v_and_b32 v33, 31, v%d" % vLane); a("v_lshlrev_b32 v33, 4, v33"); a("v_lshrrev_b32 v32, 5, v%d" % vLane); a("v_lshl_add_u32 v33, v32, 12, v33")
    a("s_lshl_b32 s8, s4, 13"); a("s_add_u32 s8, s8, %d" % WS_REC)
    nm = a.newlabel("L_po")
    spin_begin(nm)
    for i in range(4): a("buffer_load_dwordx4 %s, v33, %s, s8 offen offset:%d sc1" % (V(oi[i], 4), S4(WS), i * 1024))
    a("s_waitcnt vmcnt(0)")
    spin_until_no_sentinel(nm, range(120, 136), 32)
    a("s_mov_b32 s8, %s" % f32(LOG2E))
    combine8(34, oi, 36, 37, 38, True)
    a("v_permlane32_swap_b32 v%d, v%d" % (oi[0] + 0, oi[0] + 2)); a("v_permlane32_swap_b32 v%d, v%d" % (oi[0] + 1, oi[0] + 3))
    a("v_add_f32 v36, v%d, v%d" % (oi[0] + 0, oi[0] + 2)); a("v_add_f32 v37, v%d, v%d" % (oi[0] + 1, oi[0] + 3))
    a("v_cvt_pk_bf16_f32 v36, v36, v37")
    a("v_and_b32 v33, 31, v%d" % vLane); a("v_lshlrev_b32 v33, 3, v33"); a("v_lshrrev_b32 v37, 5, v%d" % vLane); a("v_lshl_add_u32 v33, v37, 2, v33")
    a("s_lshl_b32 s7, s3, 9"); a("v_add_u32 v33, s7, v33")
    a("ds_write_b32 v33, v36 offset:%d" % L_ACT)
    vB2 = 136
    for kb in range(4): a("ds_read_b128 %s, v%d offset:%d" % (V(vB2 + 4 * kb, 4), vActR, L_ACT + kb * 64))
    a("s_waitcnt lgkmcnt(0)")
    for kb in range(4):
        for cgp in range(2): mfma(152 + 4 * cgp, vF + (cgp * 4 + kb) * 4, vB2 + 4 * kb, kb == 0)
    xwrite(L_X3, 128, [152, 156])
    a("s_cmp_lg_u32 s3, 0"); a("s_cbranch_scc1 L_CEND")
    xsum(a.newlabel("L_sx3"), L_X3, 128, 8, 120)
    a("s_mul_i32 s7, s11, 2560"); a("s_lshl_b32 s8, s12, 7"); a("s_add_u32 s7, s7, s8"); a("s_add_u32 s7, s7, %d" % WS_Y1)
    a("v_lshlrev_b32 v33, 4, v%d" % vLane); a("v_cmp_gt_u32 vcc, 8, v%d" % vLane); oob_unless(33, 33, "vcc")
    a("buffer_store_dwordx4 v[120:123], v33, %s, s7 offen sc1" % S4(WS))
    stamp(12)
    a("s_branch L_CEND")

    def tree8(base, stride, k):
        r = [base + i * stride + k for i in range(8)]
        for x, y in ((0, 1), (2, 3), (4, 5), (6, 7), (0, 2), (4, 6), (0, 4)):
            a("v_add_f32 v%d, v%d, v%d" % (r[x], r[x], r[y]))
    a.label("L_T3")
    if wm_mlp != "early": a("s_waitcnt vmcnt(0)"); frags_mlp()
    stamp(11)
    a("v_lshlrev_b32 v33, 2, v%d" % vOwn); oob_unless(33, 33, "s[14:15]")
    nm = a.newlabel("L_py1")
    spin_begin(nm)
    for r in range(8):
        a("s_mov_b32 s7, %d" % (WS_Y1 + r * 2560))
        a("buffer_load_dwordx4 %s, v33, %s, s7 offen sc1" % (V(120 + 4 * r, 4), S4(WS)))
    a("s_waitcnt vmcnt(0)")
    spin_until_no_sentinel(nm, range(120, 152), 32)
    stamp(12)
    unpack2(152, vGaG); unpack2(154, vGaG + 2)
    vX1 = 28
    for k in range(4):
        tree8(120, 4, k)
        bf16_round("v%d" % (120 + k), "v%d" % (120 + k))
        a("v_mul_f32 v%d, v%d, v%d" % (120 + k, 152 + k, 120 + k)); bf16_round("v%d" % (120 + k), "v%d" % (120 + k))
        a("v_add_f32 v%d, v%d, v%d" % (vX1 + k, vX + k, 120 + k)); bf16_round("v%d" % (vX1 + k), "v%d" % (vX1 + k))
    a("v_lshlrev_b32 v33, 2, v%d" % vOwn)
    a("s_mov_b64 exec, s[14:15]")
    a("ds_write_b128 v33, %s offset:%d" % (V(vX1, 4), L_X4))
    a("s_mov_b64 exec, -1")
    a("v_lshlrev_b32 v33, 4, v%d" % vLane); a("v_and_b32 v32, 31, v%d" % vLane); a("v_lshlrev_b32 v32, 4, v32")
    a("v_cmp_gt_u32 vcc, 32, v%d" % vLane); a("s_mov_b64 s[60:61], vcc")
    nm = a.newlabel("L_sx4")
    spin_begin(nm)
    a("ds_read_b128 v[120:123], v33 offset:%d" % L_X4); a("ds_read_b128 v[124:127], v33 offset:%d" % (L_X4 + 1024))
    a("ds_read_b128 v[128:131], v32 offset:%d" % (L_X4 + 2048))
    a("s_waitcnt lgkmcnt(0)")
    spin_until_no_sentinel(nm, range(120, 132), 34)
    ln_stats(list(range(120, 132)), (4, "s[60:61]"), 132, 133, 34)
    ln_apply(136, vX1, 132, 133, 36)
    modulate(140, 136, vCb, vSb, 144)
    a("v_cvt_pk_bf16_f32 v36, v140, v141"); a("v_cvt_pk_bf16_f32 v37, v142, v143")
    a("ds_write_b64 v%d, v[36:37] offset:%d" % (vActW, L_ACT))
    vB3 = 120
    for kb in range(5): a("ds_read_b128 %s, v%d offset:%d" % (V(vB3 + 4 * kb, 4), vActR, L_ACT + kb * 64))
    a("s_waitcnt lgkmcnt(0)")
    stamp(13)
    for kb in range(5):
        for m in range(2):
            for cgp in range(2): mfma(140 + (m * 2 + cgp) * 4, vF + m * 40 + (cgp * 5 + kb) * 4, vB3 + 4 * kb, kb == 0)
    xwrite(L_X5, 256, [140, 144, 148, 152])
    for jg in range(10):
        r = vF + jg * 4
        a("ds_read_b64_tr_b16 %s, v15 offset:%d" % (V(r, 2), L_TW + 20480 + jg * 1024))
        a("ds_read_b64_tr_b16 %s, v15 offset:%d" % (V(r + 2, 2), L_TW + 20480 + jg * 1024 + 128))
        if jg == 4: a("s_waitcnt lgkmcnt(0)")
    a("v_and_b32 v33, 31, v%d" % vLane); a("v_lshlrev_b32 v33, 2, v33")
    nm = a.newlabel("L_sx5")
    spin_begin(nm)
    for w in range(4):
        a("ds_read_b32 v%d, v33 offset:%d" % (120 + w, L_X5 + 256 * w)); a("ds_read_b32 v%d, v33 offset:%d" % (124 + w, L_X5 + 256 * w + 128))
    a("s_waitcnt lgkmcnt(0)")
    spin_until_no_sentinel(nm, range(120, 128), 34)
    for b in (120, 124):
        a("v_add_f32 v%d, v%d, v%d" % (b, b, b + 1)); a("v_add_f32 v%d, v%d, v%d" % (b + 2, b + 2, b + 3)); a("v_add_f32 v%d, v%d, v%d" % (b, b, b + 2))
        bf16_round("v%d" % b, "v%d" % b)
    a("v_mul_f32 v34, v120, v120"); a("v_mov_b32 v35, 1.0"); a("v_fmac_f32 v35, %s, v34" % f32(0.044715))
    a("v_mul_f32 v35, v35, v120"); a("v_mul_f32 v35, %s, v35" % f32(-2.0 * 0.7978845608028654 * LOG2E))
    a("v_exp_f32 v35, v35"); a("v_add_f32 v35, 1.0, v35"); a("v_rcp_f32 v35, v35"); a("v_mul_f32 v35, v120, v35")
    bf16_round("v35", "v35")
    a("v_mul_f32 v35, v35, v124"); a("v_cvt_pk_bf16_f32 v35, v35, v35")
    a("v_lshrrev_b32 v33, 1, v33"); a("s_lshl_b32 s7, s3, 6"); a("v_add_u32 v33, s7, v33")
    a("ds_write_b16 v33, v35 offset:%d" % L_ACT2)
    a("v_add_u32 v33, s7, v%d" % vG16)
    a("ds_read_b128 v[128:131], v33 offset:%d" % L_ACT2)
    a("s_waitcnt lgkmcnt(0)")
    for jg in range(10): mfma(80 + 4 * jg, vF + 4 * jg, 128, True)
    a("s_mul_i32 s7, s11, 2560"); a("s_mul_i32 s8, s3, 640"); a("s_add_u32 s7, s7, s8"); a("s_add_u32 s7, s7, %d" % WS_Y2)
    exec4(True)
    for jg in range(10): a("buffer_store_dwordx4 %s, v%d, %s, s7 offen offset:%d sc1" % (V(80 + 4 * jg, 4), vG16, S4(WS), 64 * jg))
    exec4(False)
    stamp(14)
    a("s_branch L_CEND")

    a.label("L_T4")
    stamp(11)
    a("v_lshlrev_b32 v33, 2, v15"); a("s_lshl_b32 s8, s11, 6")
    nm = a.newlabel("L_py1f")
    spin_begin(nm)
    for r in range(8):
        a("s_add_u32 s7, s8, %d" % (WS_Y1 + r * 2560))
        a("buffer_load_dword v%d, v33, %s, s7 offen sc1" % (120 + r, S4(WS)))
    a("s_waitcnt vmcnt(0)")
    spin_until_no_sentinel(nm, range(120, 128), 32)
    tree8(120, 1, 0)
    bf16_round("v120", "v120"); a("v_mul_f32 v120, v16, v120"); bf16_round("v120", "v120")
    a("v_add_f32 v21, v20, v120"); bf16_round("v21", "v21")
    stamp(12)
    a("v_lshrrev_b32 v32, 4, v%d" % vLane); a("s_mov_b32 s7, 2560"); a("v_mul_lo_u32 v34, v32, s7"); a("v_add_u32 v33, v33, v34")
    a("v_cmp_gt_u32 vcc, 2, v32"); oob_unless(22, 33, "vcc")
    nm = a.newlabel("L_py2")
    spin_begin(nm)
    for i in range(14):
        a("s_add_u32 s7, s8, %d" % (WS_Y2 + i * 4 * 2560))
        a("buffer_load_dword v%d, v%d, %s, s7 offen sc1" % (120 + i, 33 if i < 13 else 22, S4(WS)))
    a("s_waitcnt vmcnt(0)")
    spin_until_no_sentinel(nm, range(120, 134), 32)
    stamp(13)
    for x, y in ((0, 1), (2, 3), (4, 5), (6, 7), (8, 9), (10, 11), (12, 13), (0, 2), (4, 6), (8, 10), (0, 4), (8, 12), (0, 8)):
        a("v_add_f32 v%d, v%d, v%d" % (120 + x, 120 + x, 120 + y))
    a("v_mov_b32 v34, v120"); a("v_permlane16_swap_b32 v120, v34"); a("v_add_f32 v120, v120, v34")
    a("v_mov_b32 v34, v120"); a("v_permlane32_swap_b32 v120, v34"); a("v_add_f32 v120, v120, v34")
    bf16_round("v120", "v120"); a("v_mul_f32 v120, v18, v120"); bf16_round("v120", "v120")
    a("v_add_f32 v120, v21, v120"); a("v_cvt_pk_bf16_f32 v120, v120, v120")
    srd(XS, 38, 39, 1280)
    a("v_lshlrev_b32 v33, 1, v15"); a("v_cmp_gt_u32 vcc, 16, v%d" % vLane); oob_unless(33, 33, "vcc")
    a("s_lshl_b32 s7, s11, 5")
    a("buffer_store_short v120, v33, %s, s7 offen" % S4(XS))
    a("s_cmp_lg_u32 s11, 0"); a("s_cbranch_scc1 L_CEND")
    a("v_mov_b32 v34, s%d" % sNon); a("v_cmp_eq_u32 vcc, 0, v%d" % vLane); oob_unless(33, vZero, "vcc")
    a("buffer_store_dword v34, v33, %s, 0 offen sc1" % S4(WS))
    a.label("L_CEND")
    stamp(15)
    if cfg.dbgtime:
        a("s_waitcnt lgkmcnt(0)")
        a("s_cmp_lg_u32 s3, 0"); a("s_cbranch_scc1 L_NODT")
        a("s_not_b32 s7, s64")
        a("v_mov_b32 v34, 0");
        for lane, sreg in ((4, "s7"), (5, "s94"), (6, "s84"), (7, "s78"), (8, "s70"), (9, "s64")):
            a("s_mov_b32 m0, %d" % lane); a("v_writelane_b32 v34, %s, m0" % sreg)
        a("v_lshlrev_b32 v33, 2, v%d" % vLane); a("v_cmp_gt_u32 vcc, 10, v%d" % vLane); oob_unless(33, 33, "vcc")
        a("v_cmp_lt_u32 vcc, 3, v%d" % vLane); oob_unless(33, 33, "vcc")
        a("buffer_atomic_umax v34, v33, %s, 0 offen" % S4(DBG))
        a.label("L_NODT")
    if cfg.stamps:
        a("s_add_u32 s3, s3, 8")
        stamps_flush("s3", S4(WS))
    a("s_endpgm")
    a.label("L_BAIL")
    a("s_mov_b64 exec, -1")
    a("v_mov_b32 v34, 1"); a("ds_write_b32 v%d, v34 offset:%d" % (vZero, L_QF)); a("ds_write_b32 v%d, v34 offset:%d" % (vZero, L_PF))
    a("v_mov_b32 v34, 1"); a("v_cmp_eq_u32 vcc, 0, v%d" % vLane); a("v_mov_b32 v33, 4"); oob_unless(33, 33, "vcc")
    a("buffer_atomic_add v34, v33, %s, 0 offen" % S4(DBG))
    a("s_endpgm")

HEADER = """; adaLN-conditioned block: cached multi-head attention (decode) + GEGLU MLP, one persistent launch.
; @launch grid=(256,1,1) block=(768,1,1) lds=%d
.amdgcn_target "amdgcn-amd-amdhsa--gfx950"
.text
.globl %s
.p2align 8
.type %s,@function
%s:
"""
FOOTER = """
.section .rodata,"a"
.p2align 6
.amdhsa_kernel %s
  .amdhsa_next_free_vgpr 168
  .amdhsa_next_free_sgpr 102
  .amdhsa_accum_offset 168
  .amdhsa_group_segment_fixed_size 0
  .amdhsa_kernarg_size 112
  .amdhsa_user_sgpr_count 2
  .amdhsa_user_sgpr_kernarg_segment_ptr 1
  .amdhsa_system_sgpr_workgroup_id_x 1
.end_amdhsa_kernel
"""
def build(**kw):
    cfg = Cfg(**kw)
    a = gen(cfg)
    return HEADER % (LDS_ALLOC, KNAME, KNAME, KNAME) + a.text() + FOOTER % KNAME

if __name__ == "__main__":
    out = sys.argv[1] if len(sys.argv) > 1 else "adaLN_cond__mha_block_cached__glu_gated_geglu__decode.s"
    kw = {}
    for x in sys.argv[2:]:
        k, v = x.split("=", 1)
        kw[k] = eval(v)
    open(out, "w").write(build(**kw))
    print("wrote", out, "LDS", LDS_ALLOC)
```
